```python
import torch

def _softmax(x, axis=-1):
    return torch.softmax(x, dim=axis)
def _gelu(x):
    return torch.nn.functional.gelu(x, approximate="tanh")
def _silu(x):
    return torch.nn.functional.silu(x)
def _sigmoid(x):
    return torch.sigmoid(x)
def _layernorm(x, axis=-1, eps=1e-5):
    m = x.mean(dim=axis, keepdim=True)
    v = x.var(dim=axis, keepdim=True, unbiased=False)
    return (x - m) / torch.sqrt(v + eps)
def _scatter_add(tgt, idx, src, axis=0):
    return tgt.clone().index_add_(axis, idx, src)
def _segment_sum(src, seg, n):
    out = torch.zeros((n,) + src.shape[1:], dtype=src.dtype)
    return out.index_add_(0, seg, src)
def _pad(x, pw):
    flat = tuple(v for pair in reversed(pw) for v in pair)
    return torch.nn.functional.pad(x, flat)

kernel_name = 'recurrent_scan__spectral_fnet__glu_gated_reglu__prompt'

def setup_inputs():

    _w = (lambda a: (lambda t: t.to(torch.bfloat16) if t.is_floating_point() else t)(torch.as_tensor(a)))
    def _A_setup():
        B, S, D = 1, 2048, 576
        ns = torch.arange(S)[:, None] * torch.arange(S)[None, :]
        nd = torch.arange(D)[:, None] * torch.arange(D)[None, :]
        Ws_re = torch.cos(-2.0 * torch.pi * ns / S).to(float)
        Ws_im = torch.sin(-2.0 * torch.pi * ns / S).to(float)
        Wd_re = torch.cos(-2.0 * torch.pi * nd / D).to(float)
        Wd_im = torch.sin(-2.0 * torch.pi * nd / D).to(float)
        return {
            "x": _w((lambda *s: torch.randn(*s, dtype=torch.bfloat16) * 0.05)(B, S, D)),
            "dft_seq_re": _w(Ws_re),
            "dft_seq_im": _w(Ws_im),
            "dft_hid_re": _w(Wd_re),
            "dft_hid_im": _w(Wd_im),
        }
    _A_in = _A_setup()

    def _B_setup():
        B, S, D, F = 1, 2048, 576, 4608
        return {
            "x": _w((lambda *s: torch.randn(*s, dtype=torch.bfloat16) * 0.05)(B, S, D)),
            "W_gate": _w((lambda *s: torch.randn(*s, dtype=torch.bfloat16) * 0.05)(D, F) * (2.0 / D) ** 0.5),
            "W_up": _w((lambda *s: torch.randn(*s, dtype=torch.bfloat16) * 0.05)(D, F) * (2.0 / D) ** 0.5),
            "W_down": _w((lambda *s: torch.randn(*s, dtype=torch.bfloat16) * 0.05)(F, D) * (1.0 / F) ** 0.5),
        }
    _B_in = _B_setup()

    return {
        "A_x": _A_in["x"],
        "A_dft_seq_re": _A_in["dft_seq_re"],
        "A_dft_seq_im": _A_in["dft_seq_im"],
        "A_dft_hid_re": _A_in["dft_hid_re"],
        "A_dft_hid_im": _A_in["dft_hid_im"],
        "B_x": _B_in["x"],
        "B_W_gate": _B_in["W_gate"],
        "B_W_up": _B_in["W_up"],
        "B_W_down": _B_in["W_down"],
    }

def reference(A_x, A_dft_seq_re, A_dft_seq_im, A_dft_hid_re, A_dft_hid_im, B_x, B_W_gate, B_W_up, B_W_down):
    def _A_ref(x, dft_seq_re, dft_seq_im, dft_hid_re, dft_hid_im):
        a = torch.einsum("bsd,ed->bse", x, dft_hid_re)
        b = torch.einsum("bsd,ed->bse", x, dft_hid_im)
        y = torch.einsum("ts,bse->bte", dft_seq_re, a) - torch.einsum("ts,bse->bte", dft_seq_im, b)
        return y

    def _B_ref(x, W_gate, W_up, W_down):
        gate = torch.einsum("bsd,df->bsf", x, W_gate)
        up = torch.einsum("bsd,df->bsf", x, W_up)
        gate = gate * (lambda x, dt: x.to(dt))(gate > 0, gate.dtype)
        h = gate * up
        return torch.einsum("bsf,fd->bsd", h, W_down)

    x = A_x
    xn = _layernorm(x, axis=-1)
    s = _A_ref(xn, A_dft_seq_re, A_dft_seq_im, A_dft_hid_re, A_dft_hid_im)
    g = _silu(_B_ref(xn, B_W_gate, B_W_up, B_W_down))
    return x + s * g
```

```python
import re

class I:
    __slots__ = ("text", "vm", "lg", "wvm", "wlg", "needs", "nvm", "nlg", "key", "force")
    def __init__(self, text, vm=None, lg=None, wvm=None, wlg=None, needs=None):
        self.text = text; self.vm = vm; self.lg = lg; self.wvm = wvm; self.wlg = wlg
        self.needs = needs; self.nvm = None; self.nlg = None; self.key = None

def W(vm=None, lg=None):
    return I("WAIT", wvm=list(vm) if vm is not None else None, wlg=list(lg) if lg is not None else None)

def WALL(vm=True, lg=True):
    t = "s_waitcnt" + (" vmcnt(0)" if vm else "") + (" lgkmcnt(0)" if lg else "")
    it = I(t)
    it.key = ("all", vm, lg)
    return it

def as_items(x):
    out = []
    if isinstance(x, I): return [x]
    if isinstance(x, str):
        for l in x.split("\n"):
            l = l.strip()
            if l: out.append(I(l))
        return out
    for y in x: out += as_items(y)
    return out

class Prog:
    def __init__(self):
        self.segs = []
    def add(self, *x):
        self.segs.append(("s", as_items(list(x))))
    def loop(self, n, body_fn):
        bodies = [as_items(body_fn(i)) for i in range(n)]
        for b in bodies[1:]:
            assert len(b) == len(bodies[0]), "loop body length differs"
            for x, y in zip(b, bodies[0]):
                assert x.text == y.text, f"loop body text differs: {x.text} vs {y.text}"
        self.segs.append(("l", bodies))
    def trace(self):
        for s in self.segs:
            if s[0] == "s":
                for it in s[1]: yield it, it
            else:
                for b in s[1]:
                    for st, dy in zip(s[1][0], b): yield st, dy
    def resolve(self):
        vm = {}; lg = {}; nv = 0; nl = 0
        for st, dy in self.trace():
            if dy.text == "WAIT":
                if dy.wvm is not None:
                    idx = [vm[t] for t in dy.wvm if t in vm]
                    miss = [t for t in dy.wvm if t not in vm]
                    assert not miss, f"wait on unknown vm tag {miss}"
                    if idx:
                        n = nv - 1 - max(idx)
                        st.nvm = n if st.nvm is None else min(st.nvm, n)
                if dy.wlg is not None:
                    idx = [lg[t] for t in dy.wlg if t in lg]
                    miss = [t for t in dy.wlg if t not in lg]
                    assert not miss, f"wait on unknown lg tag {miss}"
                    if idx:
                        n = nl - 1 - max(idx)
                        st.nlg = n if st.nlg is None else min(st.nlg, n)
            if dy.vm is not None: vm[dy.vm] = nv; nv += 1
            elif is_vmem(dy.text): nv += 1
            if dy.lg is not None: lg[dy.lg] = nl; nl += 1
            elif is_lds(dy.text): nl += 1
        vm = {}; lg = {}; nv = 0; nl = 0; dv = 0; dl = 0
        for st, dy in self.trace():
            if dy.text == "WAIT":
                if st.nvm is not None: dv = max(dv, nv - min(st.nvm, 63))
                if st.nlg is not None: dl = max(dl, nl - min(st.nlg, 15))
            elif dy.text.startswith("s_waitcnt"):
                m = re.search(r"vmcnt\((\d+)\)", dy.text)
                if m: dv = max(dv, nv - int(m.group(1)))
                m = re.search(r"lgkmcnt\((\d+)\)", dy.text)
                if m: dl = max(dl, nl - int(m.group(1)))
            if dy.needs:
                for t in dy.needs:
                    if t in vm: assert vm[t] < dv, f"unmet vm need {t} at {dy.text}"
                    elif t in lg: assert lg[t] < dl, f"unmet lg need {t} at {dy.text}"
                    else: raise AssertionError(f"unknown need {t} at {dy.text}")
            if dy.vm is not None: vm[dy.vm] = nv; nv += 1
            elif is_vmem(dy.text): nv += 1
            if dy.lg is not None: lg[dy.lg] = nl; nl += 1
            elif is_lds(dy.text): nl += 1
    def final(self, it):
        if it.text != "WAIT": return it.text
        p = []
        if it.nvm is not None: p.append(f"vmcnt({min(it.nvm,63)})")
        if it.nlg is not None: p.append(f"lgkmcnt({min(it.nlg,15)})")
        if not p: return "s_nop 0"
        return "s_waitcnt " + " ".join(p)
    def text(self):
        self.resolve()
        out = []
        for s in self.segs:
            items = s[1] if s[0] == "s" else s[1][0]
            out += [self.final(i) for i in items]
        return out
    def dyn_text(self, max_iter=3):
        out = []
        for s in self.segs:
            if s[0] == "s": out += [self.final(i) for i in s[1]]
            else:
                for _ in range(min(max_iter, len(s[1]))): out += [self.final(i) for i in s[1][0]]
        return out

def is_vmem(t): return t.startswith(("buffer_load", "buffer_store", "global_load", "global_store", "buffer_atomic", "global_atomic", "buffer_wbl2", "buffer_inv"))
def is_lds(t): return t.startswith("ds_")

_reg = re.compile(r"(?<![\w.])([vas])(\d+)(?![\w])|(?<![\w.])([vas])\[(\d+):(\d+)\]|\b(vcc|exec|m0|scc)\b")
def regs(op):
    s = set()
    for m in _reg.finditer(op):
        if m.group(1): s.add((m.group(1), int(m.group(2))))
        elif m.group(3): s |= {(m.group(3), i) for i in range(int(m.group(4)), int(m.group(5)) + 1)}
        else: s.add((m.group(6), 0))
    return s
def split_ops(t):
    parts = t.split(None, 1)
    if len(parts) == 1: return parts[0], []
    ops = []; d = 0; cur = ""
    for ch in parts[1]:
        if ch == "[": d += 1
        if ch == "]": d -= 1
        if ch == "," and d == 0: ops.append(cur.strip()); cur = ""
        else: cur += ch
    ops.append(cur.strip())
    return parts[0], ops
TRANS = ("v_exp_", "v_log_", "v_rcp_", "v_rsq_", "v_sqrt_", "v_sin_", "v_cos_")
def classify(t):
    mn, ops = split_ops(t)
    d = dict(mn=mn, kind="other", w=set(), r=set())
    if mn.startswith("v_mfma"):
        d["kind"] = "mfma"
        d["D"] = regs(ops[0]); d["A"] = regs(ops[1]); d["B"] = regs(ops[2]); d["C"] = regs(ops[3].split()[0])
        d["w"] = d["D"]; d["r"] = d["A"] | d["B"] | d["C"]
        if "_f32" in mn[len("v_mfma_f32"):]:
            d["cls"] = "sgemm"; d["p"] = 8 if "16x16x4" in mn else 16
        else:
            d["cls"] = "xdl"; d["p"] = 4 if "16x16x32" in mn else 8
    elif mn.startswith("v_"):
        d["kind"] = "valu"
        if mn.startswith("v_cmp"):
            d["w"] = regs(ops[0]); d["r"] = set().union(*[regs(o) for o in ops[1:]])
        elif mn.startswith(("v_add_co", "v_addc_co", "v_sub_co", "v_subb_co", "v_mad_u64", "v_div_scale")):
            d["w"] = regs(ops[0]) | regs(ops[1]); d["r"] = set().union(*[regs(o) for o in ops[2:]])
        elif mn.startswith("v_permlane"):
            d["w"] = regs(ops[0]) | regs(ops[1]); d["r"] = set(d["w"]); d["perm"] = True
        elif mn == "v_nop":
            pass
        else:
            d["w"] = regs(ops[0]); d["r"] = set().union(*[regs(o) for o in ops[1:]]) if len(ops) > 1 else set()
            if mn.startswith(("v_fmac", "v_dot2c", "v_pk_fmac", "v_writelane")): d["r"] |= d["w"]
            if mn.startswith("v_cndmask") and len(ops) == 3: d["r"].add(("vcc", 0))
        if "dpp" in mn or "row_" in t or "quad_perm" in t: d["dpp"] = True; d["dppsrc"] = regs(ops[1])
        if mn.startswith(TRANS): d["trans"] = True
        if mn.startswith(("v_readfirstlane", "v_readlane")): d["rl"] = True
        if mn.startswith("v_dot"): d["dot"] = True
        if "sdwa" in mn and "dst_sel:DWORD" not in t: d["sdwa"] = True
    elif mn.startswith("ds_"):
        d["kind"] = "ds"
        if mn.startswith(("ds_read", "ds_bpermute", "ds_permute", "ds_swizzle")):
            d["w"] = regs(ops[0]); d["r"] = set().union(*[regs(o.split()[0]) for o in ops[1:]])
        else:
            d["r"] = set().union(*[regs(o.split()[0]) for o in ops])
    elif mn.startswith(("buffer_", "global_")):
        d["kind"] = "vmem"
        if mn in ("buffer_wbl2", "buffer_inv"): return d
        lds = t.rstrip().endswith(" lds") or "load_lds" in mn
        allr = [regs(o.split()[0]) for o in ops]
        if lds:
            d["r"] = set().union(*allr) | {("m0", 0)}; d["lds"] = True
        elif "load" in mn:
            d["w"] = allr[0]; d["r"] = set().union(*allr[1:])
        elif "atomic" in mn and " sc0" in t:
            d["w"] = allr[0]; d["r"] = set().union(*allr[(1 if mn.startswith("global") else 0):])
        else:
            d["r"] = set().union(*allr)
            if "x4" in mn or "x3" in mn:
                d["wide"] = allr[0] if mn.startswith("buffer") else allr[1]
    elif mn.startswith("s_"):
        d["kind"] = "salu"
        if mn.startswith(("s_cmp", "s_cbranch", "s_branch", "s_waitcnt", "s_nop", "s_barrier", "s_endpgm", "s_sleep", "s_setprio")):
            d["r"] = set().union(*[regs(o) for o in ops]) if ops else set()
        else:
            d["w"] = regs(ops[0]) if ops else set(); d["r"] = set().union(*[regs(o) for o in ops[1:]]) if len(ops) > 1 else set()
            if "saveexec" in mn: d["w"].add(("exec", 0))
    return d

def check_hazards(lines, name=""):
    ins = []
    for t in lines:
        t = t.split(";")[0].strip()
        if not t or t.endswith(":") or t.startswith("."): continue
        c = classify(t); c["t"] = t
        m = re.match(r"s_nop (\d+)", t)
        c["ws"] = int(m.group(1)) + 1 if m else 1
        ins.append(c)
    errs = []
    for j, c in enumerate(ins):
        dist = 0
        for i in range(j - 1, max(-1, j - 24), -1):
            p = ins[i]
            need = 0
            vw = {r for r in p["w"] if r[0] in "va"}
            sw = {r for r in p["w"] if r[0] in ("s", "vcc")}
            if p["kind"] == "valu":
                if c["kind"] == "mfma" and vw & c["r"]: need = 2
                if c["kind"] == "vmem" and sw & c["r"]: need = max(need, 5)
                if c["kind"] == "valu":
                    if sw & c["r"]: need = max(need, 2)
                    if p.get("trans") and not c.get("trans") and vw & c["r"]: need = max(need, 1)
                    if c.get("dpp") and vw & c["dppsrc"]: need = max(need, 2)
                    if c.get("perm") and vw & c["r"]: need = max(need, 2)
                    if c.get("rl") and vw & c["r"]: need = max(need, 1)
                    if p.get("sdwa") and vw & (c["r"] | c["w"]): need = max(need, 1)
                    if p.get("dot"):
                        if c["mn"] == p["mn"]:
                            ops = split_ops(c["t"])[1]
                            ab = regs(ops[1]) | regs(ops[2])
                            if vw & ab: need = max(need, 3)
                        elif vw & (c["r"] | c["w"]): need = max(need, 3)
                if p.get("dot") and c["kind"] in ("mfma", "ds", "vmem") and vw & (c["r"] | c["w"]): need = max(need, 3)
                if p.get("trans") and c["kind"] in ("ds", "vmem") and vw & c["r"]: need = max(need, 1)
                if ("exec", 0) in p["w"]: need = max(need, 5)
            if p["kind"] == "mfma":
                D = p["D"]; ps = p["p"]
                if c["kind"] == "mfma":
                    if D & (c["A"] | c["B"]): need = {"xdl": {4: 8, 8: 12}, "sgemm": {8: 10, 16: 18}}[p["cls"]][ps]
                    if D & c["C"]:
                        if p["cls"] == "xdl":
                            if c["cls"] == "xdl" and c["C"] == D and c["p"] == ps: pass
                            else: need = max(need, {4: 6, 8: 10}[ps])
                        else:
                            if c["cls"] == "sgemm" and c["C"] != D: need = max(need, {8: 8, 16: 16}[ps])
                    if D & c["D"] and not (D & c["C"]):
                        need = max(need, {4: 6, 8: 10, 16: 16}[ps])
                elif c["kind"] in ("valu", "ds", "vmem"):
                    if D & (c["r"] | c["w"]): need = {"xdl": {4: 8, 8: 12}, "sgemm": {8: 10, 16: 18}}[p["cls"]][ps]
                    if c["kind"] == "valu" and p["cls"] == "xdl" and p["C"] & c["w"]: need = max(need, {4: 3, 8: 7}[ps])
            if p["kind"] == "salu" and ("m0", 0) in p["w"] and c.get("lds"): need = max(need, 1)
            if p.get("wide") and c["kind"] in ("valu",) and p["wide"] & c["w"]: need = max(need, 2)
            if p.get("wide") and c["kind"] in ("ds", "vmem", "mfma") and p["wide"] & c["w"]: need = max(need, 1)
            if need > dist:
                errs.append(f"{name}: hazard need {need} have {dist}: [{p['t']}] -> [{c['t']}]")
            dist += p["ws"]
    return errs

def interleave(mf, fill):
    by = {}
    for pos, it in fill: by.setdefault(pos, []).extend(as_items(it))
    out = list(by.get(-1, []))
    for i, m in enumerate(mf):
        out += as_items(m); out += by.get(i, [])
    for k in by: assert -1 <= k < len(mf), k
    return out

def vr(b, n=1, t="v"): return f"{t}{b}" if n == 1 else f"{t}[{b}:{b+n-1}]"

KD = """.section .rodata,"a"
.p2align 6
.amdhsa_kernel {name}
  .amdhsa_next_free_vgpr {vgpr}
  .amdhsa_next_free_sgpr 102
  .amdhsa_accum_offset {acc}
  .amdhsa_group_segment_fixed_size 0
  .amdhsa_kernarg_size 96
  .amdhsa_user_sgpr_count 2
  .amdhsa_user_sgpr_kernarg_segment_ptr 1
  .amdhsa_system_sgpr_workgroup_id_x 1
  .amdhsa_float_denorm_mode_32 3
.end_amdhsa_kernel
.text
"""

class Sched:
    def __init__(self, mf):
        self.mf = mf; self.n = len(mf)
        self.slots = {p: [] for p in range(-1, self.n)}
        self.cost = {p: 0 for p in range(-1, self.n)}
    def fix(self, p, *x, cost=None):
        it = as_items(list(x))
        self.slots[p] += it; self.cost[p] += len(it) if cost is None else cost
        return p
    def put(self, lo, x, hi=None, cap=1):
        hi = self.n - 1 if hi is None else min(hi, self.n - 1)
        lo = min(lo, hi)
        it = as_items(x)
        best = None
        for p in range(lo, hi + 1):
            if self.cost[p] + len(it) <= max(cap, len(it)) and (self.cost[p] < cap):
                best = p; break
        if best is None:
            best = min(range(lo, hi + 1), key=lambda p: (self.cost[p], p))
        self.slots[best] += it; self.cost[best] += len(it)
        return best
    def chain(self, lo, xs, hi=None, sep=1, cap=1, step=None):
        p = lo - sep
        out = []
        for i, x in enumerate(xs):
            want = max(p + sep, lo + (int(i * step) if step else 0))
            q = self.put(want, x, hi, cap)
            assert q >= p, "chain order violated"
            p = q; out.append(q)
        return out
    def out(self):
        o = list(self.slots[-1])
        for i, m in enumerate(self.mf):
            o += as_items(m); o += self.slots[i]
        return o
```

```python
from asmlib import *
import sys

KNAME = "recurrent_scan__spectral_fnet__glu_gated_reglu__prompt_kernel"

WS_H = 0
WS_U = 0x1200000
WS_CS = 0x1440000
WS_ST = 0x1460000
WS_FH = 0x1470000
WS_FP = 0x1478000
WS_PART = 0x1500000
WS_TS = 0x4000000
WS_SIZE = 268435456
OOB = 0x40000000

SH0, SHX = 0x18000, 0x38000
FRE, FIM = 0x1E000, 0x26000
STAT = 0x20000
G2SLOT = 36864

sX, sWG, sWU, sWS, sDR, sDI, sWD, sOUT, sSJ = 8, 12, 16, 20, 24, 28, 4, 52, 56
sW, sRB, sJ, sKQ, sJQ = 32, 33, 34, 35, 36
sKW, sDW, sDX, sM0W, sDelta, sCnt, sM0S, sM0M = 37, 38, 39, 40, 41, 42, 43, 3
sT0, sT1, sT2, sT3 = 44, 45, 46, 47
sHV, sW8K, sW8K1, sC8K = 48, 49, 50, 51
sCSo, sSTo = 60, 61
sNonce = 62
sFexp = 63
sFb = 64
sMk0, sMk1 = 66, 68
sHo = 70
sWo = 73
sSpin = 74
sPtr = 76
pX, pSR, pSI, pHR, pHI, pWG, pWU, pWD, pOUT, pDBG, pWS = [sPtr + 2 * i for i in (0, 1, 2, 3, 4, 6, 7, 8, 9, 10, 11)]

vXo, vWo, vMg, vMu, vAr, vAm, vBr, vLane = 0, 4, 8, 9, 10, 14, 15, 19
vMa = 20
vC0, vC1, vSt = 20, 21, 22
vZero, vSig, vR2b = 20, 21, 22
vFlag = 23
vWd = 24
vR2 = 33
vS = 34
vCS = 38
vT = 48
vAcc = 56
aB, aA, aM, aAcc, aZ = 0, 64, 100, 124, 212
aSel, aOne = 244, 248
aSide = 212

_aset = [(5, b) for b in range(8)] + [(7, b) for b in range(8)] + [(3, b) for b in range(2, 8)]
_vset = [(t, b) for t in range(9) for b in range(8) if (t, b) not in _aset]
assert len(_vset) == 50 and len(_aset) == 22
def acc_loc(t, b):
    if t == "z": return ("a", aZ + 4 * b)
    if (t, b) in _aset: return ("a", aAcc + 4 * _aset.index((t, b)))
    return ("v", vAcc + 4 * _vset.index((t, b)))
def acc(t, b):
    k, r = acc_loc(t, b); return vr(r, 4, k)
def breg(st, b): return vr(aB + (st * 8 + b) * 4, 4, "a")
def areg(t): return vr(aA + 4 * t, 4, "a")

class Cfg:
    ts = False
    stop = None
C = Cfg()

_nst = [0]
vTSV = 55
def stamp(i):
    if not C.ts: return []
    return ["s_memtime s[100:101]", "s_waitcnt lgkmcnt(0)", f"v_writelane_b32 v{vTSV}, s100, {i}"]

def dma(voff, srd, soff, off, tag):
    o = f" offset:{off}" if off else ""
    return I(f"buffer_load_dwordx4 v{voff}, s[{srd}:{srd+3}], {soff} offen{o} lds", vm=tag)
def srd(d, p, size):
    return f"s_mov_b32 s{d}, s{p}\ns_mov_b32 s{d+1}, s{p+1}\ns_mov_b32 s{d+2}, {size}\ns_mov_b32 s{d+3}, 0x20000"

def pure_dmas(k):
    g = [dma(vWo + i, sWG, f"s{sKW}", 1024 * i, ("pw", k, 0, i)) for i in range(4)]
    u = [dma(vWo + i, sWU, f"s{sKW}", 1024 * i, ("pw", k, 1, i)) for i in range(4)]
    return g, u
def shared_dmas(D):
    x = [dma(vXo + i, sX, f"s{sDX}", 1024 * i, ("sx", D, i)) for i in range(4)]
    return x, dma(vMg, sWG, f"s{sDW}", 0, ("sm", D, 0)), dma(vMu, sWU, f"s{sDW}", 0, ("sm", D, 1))
def pw_tags(k): return [("pw", k, m, i) for m in range(2) for i in range(4)]
def sh_tags(D): return [("sx", D, i) for i in range(4)] + [("sm", D, 0), ("sm", D, 1)]

def a_reads(t, k):
    if t < 8:
        addr, off = vAr + (t >> 1), (t & 1) * 4096
        return [I(f"ds_read_b64_tr_b16 a[{aA+4*t+2*h}:{aA+4*t+2*h+1}], v{addr} offset:{off+512*h}", lg=("A", k, t, h), needs=pw_tags(k)) for h in range(2)]
    off = 16384 + (k & 1) * 2048
    return [I(f"ds_read_b64_tr_b16 a[{aA+32+2*h}:{aA+32+2*h+1}], v{vAm} offset:{off+256*h}", lg=("A", k, 8, h), needs=sh_tags(k >> 1)) for h in range(2)]
def b_read(b, k):
    return I(f"ds_read_b128 {breg(k & 1, b)}, v{vBr + (b >> 1)} offset:{(b & 1) * 2048}", lg=("B", k, b), needs=sh_tags(k >> 1))
def m_load(k):
    return I(f"global_load_dwordx4 a[{aM+(k&1)*4}:{aM+(k&1)*4+3}], v[{vMa}:{vMa+1}], off offset:{(k&1)*64}", vm=("M", k))
def side_loads(k):
    b = aM + (k & 1) * 12
    return [I(f"buffer_load_dwordx4 a[{b}:{b+3}], v{vC0}, s[{sSJ}:{sSJ+3}], s{sCSo} offen", vm=("SJ", k, 0)),
            I(f"buffer_load_dwordx4 a[{b+4}:{b+7}], v{vC1}, s[{sSJ}:{sSJ+3}], s{sCSo} offen", vm=("SJ", k, 1)),
            I(f"buffer_load_dwordx4 a[{b+8}:{b+11}], v{vSt}, s[{sX}:{sX+3}], s{sSTo} offen", vm=("SJ", k, 2))]
def side_adv():
    return [f"s_add_u32 s{sCSo}, s{sCSo}, {16*9216}", f"s_add_u32 s{sSTo}, s{sSTo}, 64",
            [f"s_cmp_ge_u32 s{sSTo}, 576", f"s_cselect_b32 s{sSTo}, {OOB}, s{sSTo}"]]

def prologue(heavy):
    P = []; a = P.append
    L = vLane
    a(f"s_load_dwordx16 s[{sPtr}:{sPtr+15}], s[0:1], 0")
    a(f"s_load_dwordx8 s[{sPtr+16}:{sPtr+23}], s[0:1], 64")
    if heavy: a(f"s_memrealtime s[{sNonce}:{sNonce+1}]")
    a(f"""
    v_lshrrev_b32 v1, 6, v0
    v_and_b32 v{L}, 63, v0
    v_readfirstlane_b32 s{sW}, v1
    s_and_b32 s{sKQ}, s2, 3
    s_bfe_u32 s{sT0}, s2, 0x10002
    s_bfe_u32 s{sJQ}, s2, 0x20003
    s_lshr_b32 s{sT1}, s2, 5
    s_lshl_b32 s{sT0}, s{sT0}, 3
    s_add_u32 s{sRB}, s{sT0}, s{sT1}
    s_lshl_b32 s{sJ}, s{sKQ}, 2
    s_add_u32 s{sJ}, s{sJ}, s{sJQ}
    s_lshl_b32 s{sW8K}, s{sW}, 13
    """)
    t1, t2, t3, t4 = vT, vT + 1, vT + 2, vT + 3
    a(f"""
    s_lshl_b32 s{sT0}, s{sRB}, 2
    s_add_u32 s{sT0}, s{sT0}, s{sW}
    s_mul_i32 s{sT0}, s{sT0}, 1152
    v_lshrrev_b32 v{t1}, 3, v{L}
    v_mul_u32_u24 v{t4}, 73728, v{t1}
    v_add_u32 v{t4}, s{sT0}, v{t4}
    v_and_b32 v{t2}, 7, v{L}
    v_lshrrev_b32 v{t3}, 4, v{L}
    v_xor_b32 v{t3}, v{t2}, v{t3}
    v_lshl_add_u32 v{vXo}, v{t3}, 4, v{t4}
    v_xor_b32 v{t3}, 4, v{t3}
    v_lshl_add_u32 v{vXo+1}, v{t3}, 4, v{t4}
    v_add_u32 v{vXo+2}, {2*(589824-1024)}, v{vXo}
    v_add_u32 v{vXo+3}, {3*(589824-1024)}, v{vXo+1}
    v_add_u32 v{vXo+1}, {589824-1024}, v{vXo+1}
    """)
    a(f"""
    s_mul_i32 s{sT0}, s{sJ}, 576
    s_and_b32 s{sT1}, s{sJ}, 1
    s_lshl_b32 s{sT2}, s{sT1}, 6
    s_add_u32 s{sT2}, s{sT2}, s{sT0}
    s_lshl_b32 s{sT3}, s{sW}, 7
    s_add_u32 s{sT2}, s{sT2}, s{sT3}
    s_xor_b32 s{sT1}, s{sT1}, 1
    s_lshl_b32 s{sT1}, s{sT1}, 9
    s_add_u32 s{sT1}, s{sT1}, s{sT0}
    v_mul_u32_u24 v{t4}, 9216, v{t1}
    v_add_u32 v{t4}, s{sT2}, v{t4}
    v_bfe_u32 v{t3}, v{L}, 4, 1
    v_lshlrev_b32 v{t3}, 1, v{t3}
    v_xor_b32 v{t3}, v{t2}, v{t3}
    v_lshl_add_u32 v{vWo}, v{t3}, 4, v{t4}
    v_xor_b32 v{t3}, 4, v{t3}
    v_lshl_add_u32 v{vWo+1}, v{t3}, 4, v{t4}
    v_add_u32 v{vWo+2}, {2*(8*9216-1024)}, v{vWo}
    v_add_u32 v{vWo+3}, {3*(8*9216-1024)}, v{vWo+1}
    v_add_u32 v{vWo+1}, {8*9216-1024}, v{vWo+1}
    s_mul_i32 s{sT0}, s{sW}, {16*9216}
    s_add_u32 s{sT1}, s{sT1}, s{sT0}
    v_lshrrev_b32 v{t1}, 2, v{L}
    v_mul_u32_u24 v{t4}, 9216, v{t1}
    v_add_u32 v{t4}, s{sT1}, v{t4}
    v_and_b32 v{t2}, 3, v{L}
    v_lshrrev_b32 v{t3}, 5, v{L}
    v_lshlrev_b32 v{t3}, 1, v{t3}
    v_xor_b32 v{t2}, v{t2}, v{t3}
    v_lshl_add_u32 v{vMg}, v{t2}, 4, v{t4}
    v_xor_b32 v{vMu}, 16, v{vMg}
    s_lshl_b32 s{sM0S}, s{sW}, 12
    s_add_u32 s{sM0S}, s{sM0S}, {SH0}
    s_lshl_b32 s{sM0M}, s{sW}, 10
    s_add_u32 s{sM0M}, s{sM0M}, {SH0+16384}
    s_waitcnt lgkmcnt(0)
    """)
    a(srd(sX, pX, 2359296)); a(srd(sWG, pWG, 5308416)); a(srd(sWU, pWU, 5308416))
    if heavy:
        a(uncounted(as_items(f"""
        s_or_b32 s{sT0}, s2, s{sW}
        s_cbranch_scc1 L_nononce
        s_or_b32 s{sNonce}, s{sNonce}, 1
        v_mov_b32 v{t1}, 0
        v_mov_b32 v{t2}, s{sNonce}
        global_store_dword v{t1}, v{t2}, s[{pDBG}:{pDBG+1}] offset:8 sc1
        L_nononce:
        """)))
    def sh(D):
        x, mg, mu = shared_dmas(D)
        tg = SHX if D else 0
        return [f"s_mov_b32 s{sDX}, {D*128}", f"s_xor_b32 m0, s{sM0S}, {tg}", f"s_mov_b32 s{sDW}, {D*589824}"] + x + \
               [f"s_xor_b32 m0, s{sM0M}, {tg}", "s_nop 0", mg, "s_add_u32 m0, m0, 4096", "s_nop 0", mu]
    def pw(k):
        g, u = pure_dmas(k)
        return [f"s_add_u32 m0, s{sW8K}, {k*32768}", f"s_mov_b32 s{sKW}, {k*294912}"] + g + ["s_add_u32 m0, m0, 4096", "s_nop 0"] + u
    a(sh(0)); a(pw(0))
    a(stamp(0))
    R = []; r = R.append
    r(srd(sWS, pWS, WS_SIZE)); r(srd(sWD, pWD, 5308416)); r(srd(sDR, pSR, 8388608)); r(srd(sDI, pSI, 8388608)); r(srd(sOUT, pOUT, 2359296))
    t5, t6, t7 = vT + 4, vT + 5, vT + 6
    r(f"""
    v_lshrrev_b32 v{t1}, 4, v{L}
    v_bfe_u32 v{t2}, v{L}, 2, 2
    v_and_b32 v{t3}, 3, v{L}
    v_lshl_add_u32 v{t4}, v{t1}, 3, v{t2}
    v_lshlrev_b32 v{t5}, 7, v{t4}
    v_lshl_add_u32 v{t5}, v{t3}, 3, v{t5}
    v_add_u32 v{t5}, s{sW8K}, v{t5}
    v_lshrrev_b32 v{t6}, 1, v{t2}
    v_and_b32 v{t7}, 1, v{t1}
    v_lshl_or_b32 v{t6}, v{t7}, 1, v{t6}
    v_lshl_add_u32 v{vAr}, v{t6}, 5, v{t5}
    v_xor_b32 v{vAr+1}, 32, v{vAr}
    v_xor_b32 v{vAr+2}, 64, v{vAr}
    v_xor_b32 v{vAr+3}, 96, v{vAr}
    v_lshlrev_b32 v{t5}, 6, v{t4}
    v_lshrrev_b32 v{t6}, 1, v{t3}
    v_lshl_add_u32 v{t5}, v{t6}, 12, v{t5}
    v_lshlrev_b32 v{t7}, 1, v{t7}
    v_xor_b32 v{t7}, v{t7}, v{t6}
    v_xor_b32 v{t7}, s{sW}, v{t7}
    v_lshl_add_u32 v{t5}, v{t7}, 4, v{t5}
    v_and_b32 v{t6}, 1, v{t3}
    v_lshl_add_u32 v{t5}, v{t6}, 3, v{t5}
    v_add_u32 v{vAm}, {SH0}, v{t5}
    v_and_b32 v{t2}, 15, v{L}
    v_lshrrev_b32 v{t3}, 1, v{t2}
    v_xor_b32 v{t3}, v{t3}, v{t1}
    v_lshlrev_b32 v{t3}, 4, v{t3}
    v_lshl_add_u32 v{t3}, v{t2}, 7, v{t3}
    v_add_u32 v{vBr}, s{sM0S}, v{t3}
    v_xor_b32 v{vBr+1}, 0x1000, v{vBr}
    v_xor_b32 v{vBr+2}, 0x2000, v{vBr}
    v_xor_b32 v{vBr+3}, 0x3000, v{vBr}
    """)
    r(f"s_mul_i32 s{sT0}, s{sJQ}, 288\ns_lshl_b32 s{sT1}, s{sKQ}, 2")
    for i in range(9):
        r(f"""
        v_add_u32 v{t1}, {64*i}, v{L}
        v_mul_u32_u24 v{t2}, 3641, v{t1}
        v_lshrrev_b32 v{t2}, 16, v{t2}
        v_mul_u32_u24 v{t3}, 18, v{t2}
        v_sub_u32 v{t1}, v{t1}, v{t3}
        v_cmp_gt_u32 vcc, 16, v{t1}
        v_xor_b32 v{t3}, s{sT1}, v{t1}
        v_mul_u32_u24 v{t2}, 1152, v{t2}
        v_cndmask_b32 v{t1}, v{t1}, v{t3}, vcc
        v_lshl_add_u32 v{t2}, v{t1}, 4, v{t2}
        v_add_u32 v{t2}, s{sT0}, v{t2}
        v_subrev_u32 v{vWd+i}, {1024*(i%4)}, v{t2}
        """)
    for (t, b) in _vset:
        for i in range(4): r(f"v_mov_b32 v{acc_loc(t,b)[1]+i}, 0")
    for i in range(88): r(f"v_accvgpr_write_b32 a{aAcc+i}, 0")
    for i in range(32 if heavy else 12): r(f"v_accvgpr_write_b32 a{aZ+i}, 0")
    R = as_items(R)
    V = []; V2 = []; v = V.append
    if heavy:
        v(f"""
        s_lshl_b32 s{sT0}, s{sHV}, 2
        s_add_u32 s{sT0}, s{sT0}, s{sW}
        s_lshl_b32 s{sT0}, s{sT0}, 3
        s_add_u32 s{sT0}, s{sT0}, 1
        s_mul_i32 s{sT0}, s{sT0}, 1152
        v_and_b32 v{t1}, 7, v{L}
        v_mul_u32_u24 v{t1}, 1152, v{t1}
        v_lshrrev_b32 v{t2}, 4, v{L}
        v_lshl_add_u32 v{t1}, v{t2}, 4, v{t1}
        v_add_u32 v{t1}, s{sT0}, v{t1}
        v_and_b32 v{t2}, 8, v{L}
        v_cmp_eq_u32 vcc, 0, v{t2}
        v_mov_b32 v{t2}, s{pHR}
        v_mov_b32 v{t3}, s{pHI}
        v_mov_b32 v{t4}, s{pHR+1}
        v_mov_b32 v{t5}, s{pHI+1}
        v_cndmask_b32 v{t2}, v{t3}, v{t2}, vcc
        v_cndmask_b32 v{t4}, v{t5}, v{t4}, vcc
        v_add_co_u32 v{vMa}, vcc, v{t2}, v{t1}
        s_nop 1
        v_addc_co_u32 v{vMa+1}, vcc, 0, v{t4}, vcc
        """)
        v([m_load(0), m_load(1)])
        v = V2.append
        v(srd(sSJ, pDBG, 256))
        v(f"""
        v_add_co_u32 v{vMa}, vcc, 128, v{vMa}
        s_lshl_b32 s{sT0}, s{sRB}, 2
        s_add_u32 s{sT0}, s{sT0}, s{sW}
        v_addc_co_u32 v{vMa+1}, vcc, 0, v{vMa+1}, vcc
        s_lshl_b32 s{sT0}, s{sT0}, 12
        v_lshrrev_b32 v{t1}, 2, v{L}
        v_lshlrev_b32 v{t1}, 18, v{t1}
        v_add_u32 v{t1}, s{sT0}, v{t1}
        v_and_b32 v{t2}, 3, v{L}
        v_bfe_u32 v{t3}, v{L}, 4, 1
        v_lshlrev_b32 v{t3}, 1, v{t3}
        v_xor_b32 v{t2}, v{t2}, v{t3}
        v_lshl_add_u32 v{t1}, v{t2}, 4, v{t1}
        s_lshl_b32 s{sT0}, s{sW}, 11
        s_add_u32 m0, s{sT0}, {FRE}
        s_mov_b32 s{sT1}, {16*64*4096 - 1024}
        """)
        v([dma(t1, sDR, "0", 0, ("F", 0, 0)), dma(t1, sDR, f"s{sT1}", 1024, ("F", 0, 1)),
           f"s_add_u32 m0, s{sT0}, {FIM}", "s_nop 0",
           dma(t1, sDI, "0", 0, ("F", 1, 0)), dma(t1, sDI, f"s{sT1}", 1024, ("F", 1, 1))])
    else:
        v(f"""
        s_lshl_b32 s{sT0}, s{sRB}, 2
        s_add_u32 s{sT0}, s{sT0}, s{sKQ}
        s_mul_i32 s{sT1}, s{sRB}, 3
        s_add_u32 s{sT1}, s{sT1}, s{sKQ}
        s_add_u32 s{sT1}, s{sT1}, 63
        s_cmp_eq_u32 s{sJQ}, 3
        s_cselect_b32 s{sT0}, s{sT0}, s{sT1}
        s_cselect_b32 s{sSTo}, 0, {OOB}
        s_mul_i32 s{sT1}, s{sT0}, 171
        s_lshr_b32 s{sT1}, s{sT1}, 9
        s_mul_i32 s{sT2}, s{sT1}, 3
        s_sub_u32 s{sT2}, s{sT0}, s{sT2}
        s_mul_i32 s{sCSo}, s{sT2}, {192*9216}
        s_mul_i32 s{sHV}, s{sT2}, 36864
        s_cmp_ge_u32 s{sT1}, 18
        s_cselect_b32 s{sSJ}, s{pWU}, s{pWG}
        s_cselect_b32 s{sSJ+1}, s{pWU+1}, s{pWG+1}
        s_cselect_b32 s{sT2}, 18, 0
        s_mov_b32 s{sSJ+2}, 5308416
        s_mov_b32 s{sSJ+3}, 0x20000
        s_lshl_b32 s{sT3}, s{sT1}, 10
        s_add_u32 s{sHV}, s{sHV}, s{sT3}
        s_lshl_b32 s{sT3}, s{sW}, 8
        s_add_u32 s{sHV}, s{sHV}, s{sT3}
        s_add_u32 s{sHV}, s{sHV}, {WS_CS}
        s_sub_u32 s{sT1}, s{sT1}, s{sT2}
        s_lshl_b32 s{sT1}, s{sT1}, 9
        s_lshl_b32 s{sT3}, s{sW}, 7
        s_add_u32 s{sT1}, s{sT1}, s{sT3}
        s_cmp_ge_u32 s{sT0}, 108
        s_cselect_b32 s{sCSo}, {OOB}, s{sCSo}
        s_cselect_b32 s{sHV}, {OOB}, s{sHV}
        v_lshrrev_b32 v{t1}, 4, v{L}
        v_bfe_u32 v{t2}, v{L}, 3, 1
        v_lshl_add_u32 v{t2}, v{t2}, 2, v{t1}
        v_mul_u32_u24 v{t2}, 9216, v{t2}
        v_and_b32 v{t3}, 7, v{L}
        v_lshl_add_u32 v{t2}, v{t3}, 4, v{t2}
        v_add_u32 v{vC0}, s{sT1}, v{t2}
        v_add_u32 v{vC1}, {8*9216}, v{vC0}
        s_lshr_b32 s{sT0}, s{sW}, 1
        s_lshl_b32 s{sT0}, s{sT0}, 10
        s_lshl_b32 s{sT1}, s{sRB}, 2
        s_add_u32 s{sT0}, s{sT0}, s{sT1}
        s_add_u32 s{sT0}, s{sT0}, s{sKQ}
        s_mul_i32 s{sT0}, s{sT0}, 1152
        s_and_b32 s{sT1}, s{sW}, 1
        s_mul_i32 s{sT1}, s{sT1}, 576
        s_add_u32 s{sT0}, s{sT0}, s{sT1}
        v_and_b32 v{t2}, 15, v{L}
        v_mul_u32_u24 v{t3}, 73728, v{t2}
        v_lshl_add_u32 v{t3}, v{t1}, 4, v{t3}
        v_add_u32 v{vSt}, s{sT0}, v{t3}
        """)
        v(side_loads(0)); v(side_adv()); v(side_loads(1)); v(side_adv())
        v = V2.append
        v(f"""
        v_and_b32 v{t2}, 1, v{L}
        v_lshlrev_b32 v{t2}, 4, v{t2}
        v_mov_b32 v{t3}, 0x3f80
        v_lshlrev_b32 v{t2}, v{t2}, v{t3}
        v_bfe_u32 v{t3}, v{L}, 1, 2
        s_mov_b32 s{sT0}, 0x3f803f80
        """)
        for p in range(4):
            v(f"v_cmp_eq_u32 vcc, {p}, v{t3}\nv_accvgpr_write_b32 a{aOne+p}, s{sT0}\ns_nop 0\nv_cndmask_b32 v{t4}, 0, v{t2}, vcc\nv_accvgpr_write_b32 a{aSel+p}, v{t4}")
    a(V); a(R[:110]); a(pw(1)); a(R[110:230]); a(sh(1)); a(R[230:330]); a(pw(2)); a(R[330:]); a(V2)
    a(f"""
    s_mov_b32 s{sKW}, {3*294912}
    s_mov_b32 s{sDW}, {2*589824}
    s_mov_b32 s{sDX}, {2*128}
    s_mov_b32 s{sC8K}, 0x8000
    s_mov_b32 s{sDelta}, 0x8000
    s_mov_b32 s{sM0W}, s{sW8K}
    s_add_u32 s{sW8K1}, s{sW8K}, 0x10000
    s_mov_b32 s{sCnt}, 7
    """)
    a(W(vm=sh_tags(0) + pw_tags(0)))
    a("s_barrier")
    a(stamp(1))
    a([b_read(b, 0) for b in range(8)])
    for t in (0, 1, 2, 3, 8, 4, 5, 6): a(a_reads(t, 0))
    for i in range(3): a(f"v_add_u32 v{vAr+i}, 0x8000, v{vAr+i}")
    for i in range(4): a(f"v_xor_b32 v{vBr+i}, 64, v{vBr+i}")
    return P

ORDER = [0, 1, 2, 3, 8, "x", 4, 5, 6, 7]
def g1_mfmas(k, heavy):
    kp = k & 1
    mf = []; st = {}; en = {}
    for t in ORDER:
        st[t] = len(mf)
        if t == "x":
            if heavy:
                for b in range(8):
                    mf.append(I(f"v_mfma_f32_16x16x32_bf16 {acc('z',b)}, {breg(kp,b)}, a[{aM+kp*4}:{aM+kp*4+3}], {acc('z',b)}", needs=[("M", k), ("B", k, b)]))
            elif k < 16:
                s = aM + kp * 12
                nd = [("SJ", k, i) for i in range(3)]
                mf.append(I(f"v_mfma_f32_16x16x32_bf16 a[{aSide}:{aSide+3}], a[{aSel}:{aSel+3}], a[{s}:{s+3}], a[{aSide}:{aSide+3}]", needs=nd))
                mf.append(I(f"v_mfma_f32_16x16x32_bf16 a[{aSide+4}:{aSide+7}], a[{aOne}:{aOne+3}], a[{s+8}:{s+11}], a[{aSide+4}:{aSide+7}]", needs=nd))
                mf.append(I(f"v_mfma_f32_16x16x32_bf16 a[{aSide+8}:{aSide+11}], a[{s+8}:{s+11}], a[{s+8}:{s+11}], a[{aSide+8}:{aSide+11}]", needs=nd))
                mf.append(I(f"v_mfma_f32_16x16x32_bf16 a[{aSide}:{aSide+3}], a[{aSel}:{aSel+3}], a[{s+4}:{s+7}], a[{aSide}:{aSide+3}]", needs=nd))
        else:
            for b in range(8):
                mf.append(I(f"v_mfma_f32_16x16x32_bf16 {acc(t,b)}, {areg(t)}, {breg(kp,b)}, {acc(t,b)}",
                            needs=[("A", k, t, 0), ("A", k, t, 1), ("B", k, b)]))
        en[t] = len(mf) - 1
    return mf, st, en

def g1_step(k, heavy, last=False):
    kp, D = k & 1, k >> 1
    mf, st, en = g1_mfmas(k, heavy)
    S = Sched(mf)
    S.fix(-1, W(lg=[("B", k, b) for b in range(8)] + [("A", k, 0, 1)]))
    r7 = a_reads(7, k)
    S.fix(0, r7[0]); S.fix(1, r7[1])
    S.fix(2, f"v_add_u32 v{vAr+3}, s{sDelta}, v{vAr+3}")
    S.fix(3, f"s_mov_b32 m0, s{sM0W}")
    S.fix(4, f"s_add_u32 s{sM0W}, s{sM0W}, s{sDelta}")
    S.fix(5, f"s_cmp_eq_u32 s{sM0W}, s{sW8K1}", f"s_cselect_b32 s{sDelta}, {(-65536) & 0xffffffff}, s{sC8K}")
    if kp == 1:
        S.fix(6, W(vm=sh_tags(D + 1) + pw_tags(k + 1), lg=[("A", k, 6, 1)]), "s_barrier")
    else:
        S.fix(6, W(vm=pw_tags(k + 1), lg=[("A", k, 6, 1)]))
    if heavy: S.fix(st["x"] - 1, W(vm=[("M", k)]))
    elif k < 16: S.fix(st["x"] - 1, W(vm=[("SJ", k, 2)]))
    for t in ORDER[:-1]:
        if t == "x": continue
        r = a_reads(t, k + 1)
        if t == 8 and kp == 1: S.put(st[8], f"v_xor_b32 v{vAm}, {SHX}, v{vAm}", hi=en[8] - 1)
        ps = S.chain(en[t], r)
        if t in (1, 3, 5): S.put(ps[-1] + 1, f"v_add_u32 v{vAr+(t>>1)}, s{sDelta}, v{vAr+(t>>1)}", hi=ps[-1] + 8)
    xs = []
    for b in range(8):
        xs.append(b_read(b, k + 1))
        if b & 1: xs.append(f"v_xor_b32 v{vBr+(b>>1)}, {64 if kp == 1 else (64 ^ SHX)}, v{vBr+(b>>1)}")
    S.chain(10, xs, step=4.2)
    if not last:
        g, u = pure_dmas(k + 3)
        seq = g + [[W(lg=[("A", k, 7, 1)]), "s_add_u32 m0, m0, 4096"]] + u
        if kp == 1:
            x, mg, mu = shared_dmas(D + 2)
            seq += [f"s_mov_b32 m0, s{sM0S}"] + x + [f"s_mov_b32 m0, s{sM0M}", mg, "s_add_u32 m0, m0, 4096", mu]
        seq += [f"s_add_u32 s{sKW}, s{sKW}, 294912"]
        if kp == 1:
            seq += [f"s_add_u32 s{sDW}, s{sDW}, 589824", f"s_add_u32 s{sDX}, s{sDX}, 128",
                    f"s_xor_b32 s{sM0S}, s{sM0S}, {SHX}", f"s_xor_b32 s{sM0M}, s{sM0M}, {SHX}"]
        S.chain(8, seq, step=(S.n - 12) / len(seq))
        if heavy:
            p = S.put(en["x"] + 1, m_load(k + 2))
            if kp == 1:
                p = S.put(p + 1, f"v_add_co_u32 v{vMa}, vcc, 128, v{vMa}")
                S.put(p + 3, f"v_addc_co_u32 v{vMa+1}, vcc, 0, v{vMa+1}, vcc")
        else:
            S.chain(en["x"] + 1, side_loads(k + 2) + side_adv(), step=3)
    else:
        S.fix(st[7] - 1, W(lg=[("A", k, 7, 1)]))
    return S, st, en

def poll_slow(label, base, off, exp, cmp="eq"):
    return as_items(f"""
    {label}:
    s_mov_b32 s{sSpin}, 0x40000
    {label}_l:
    s_sleep 2
    global_load_dword v{vFlag}, v{vZero}, s[{base}:{base+1}] offset:{off} sc1
    s_waitcnt vmcnt(0)
    v_readfirstlane_b32 s{sT0}, v{vFlag}
    s_sub_u32 s{sSpin}, s{sSpin}, 1
    s_cbranch_scc1 {label}_r
    s_cmp_{cmp}_u32 s{sT0}, {exp}
    s_cbranch_scc0 {label}_l
    s_branch {label}_r
    """)

def flag_check(label, exp, tag, cmp="eq"):
    return [W(vm=[tag]), f"v_readfirstlane_b32 s{sT0}, v{vFlag}", "s_nop 0", f"s_cmp_{cmp}_u32 s{sT0}, {exp}", f"s_cbranch_scc0 {label}", f"{label}_r:"]

def wd_dmas(stage, soff):
    base = (stage % 3) * G2SLOT
    seq = []
    for i in range(9):
        if i % 4 == 0: seq.append(f"s_add_u32 m0, s{sW9K}, {base + 1024 * i}")
        seq.append(dma(vWd + i, sWD, soff, 1024 * (i % 4), ("wd", stage, i)))
    return seq
def wd_tags(stage): return [("wd", stage, i) for i in range(9)]
sW9K = sW8K1

vTab = [vXo, vXo + 1, vXo + 2, vXo + 3]

def g1_tail(heavy, OL):
    tg = "h" if heavy else "l"
    L = vLane
    t1, t2, t3, t4, t5, t6 = [vT + i for i in range(6)]
    out = []
    S, st, en = g1_step(16, heavy, last=True)
    ch = [f"v_mov_b32 v{vZero}, 0", f"v_or_b32 v{vSig}, s{sW}, v{L}", f"v_cmp_eq_u32 vcc, 0, v{vSig}", f"v_mov_b32 v{vSig}, {OOB}",
          I(f"global_load_dword v{vFlag}, v{vZero}, s[{pDBG}:{pDBG+1}] sc1", vm="fl_side"),
          I(f"global_load_dword v{vR2}, v{vZero}, s[{pDBG}:{pDBG+1}] offset:8 sc1", vm="fl_nonce"),
          f"v_cndmask_b32 v{vSig}, v{vSig}, v{vZero}, vcc"]
    ch += as_items(f"""
    s_mul_i32 s{sT0}, s{sJ}, 1152
    s_and_b32 s{sT1}, s{sJ}, 1
    s_lshl_b32 s{sT2}, s{sT1}, 7
    s_add_u32 s{sT2}, s{sT2}, s{sT0}
    s_lshl_b32 s{sT3}, s{sW}, 8
    s_add_u32 s{sT2}, s{sT2}, s{sT3}
    s_xor_b32 s{sT1}, s{sT1}, 1
    s_lshl_b32 s{sT1}, s{sT1}, 10
    s_add_u32 s{sT1}, s{sT1}, s{sT0}
    s_lshl_b32 s{sT3}, s{sW}, 5
    s_add_u32 s{sT1}, s{sT1}, s{sT3}
    v_lshrrev_b32 v{t1}, 4, v{L}
    v_mul_u32_u24 v{t2}, 36864, v{t1}
    v_cmp_eq_u32 vcc, 3, v{t1}
    v_mov_b32 v{t3}, {OOB}
    v_and_b32 v{t4}, 15, v{L}
    v_cndmask_b32 v{t2}, v{t2}, v{t3}, vcc
    v_lshl_add_u32 v{t5}, v{t4}, 2, v{t2}
    v_add_u32 v{vWo}, s{sT2}, v{t5}
    v_and_b32 v{t5}, 7, v{L}
    v_lshl_add_u32 v{t2}, v{t5}, 2, v{t2}
    v_bfe_u32 v{t5}, v{L}, 3, 1
    v_mul_u32_u24 v{t5}, 18432, v{t5}
    v_add3_u32 v{vWo+1}, v{t2}, v{t5}, s{sT1}
    v_cmp_lt_u32 vcc, 1, v{t1}
    v_lshlrev_b32 v{t1}, 14, v{t1}
    s_lshl_b32 s{sT0}, s{sRB}, 2
    s_add_u32 s{sT0}, s{sT0}, s{sW}
    v_cndmask_b32 v{t1}, v{t1}, v{t3}, vcc
    s_lshl_b32 s{sT0}, s{sT0}, 8
    v_lshl_add_u32 v{t1}, v{t4}, 3, v{t1}
    v_add_u32 v{vWo+2}, s{sT0}, v{t1}
    s_mov_b32 s{sKW}, {WS_CS}
    s_mov_b32 s{sDW}, {WS_CS+18432}
    s_mov_b32 s{sDX}, {WS_ST}
    """)
    ps = S.chain(8, ch, cap=2, sep=0, step=0.9)
    chk = flag_check(f"L_side_{tg}", 112, "fl_side", "ge")
    OL.append(poll_slow(f"L_side_{tg}", pDBG, 0, 112, "ge"))
    p = max(ps[-1] + 1, 50)
    S.fix(p, chk)
    lds = [I(f"buffer_load_dwordx2 v[{vS+2*b}:{vS+2*b+1}], v{vWo+2}, s[{sWS}:{sWS+3}], s{sDX} offen offset:{128*b} sc1", vm=("st", b)) for b in range(2)]
    for t in range(8):
        lds.append(I(f"buffer_load_dword v{vCS+t}, v{vWo}, s[{sWS}:{sWS+3}], s{sDW if t & 1 else sKW} offen offset:{64*(t>>1)} sc1", vm=("cs", t)))
    lds.append(I(f"buffer_load_dword v{vCS+8}, v{vWo+1}, s[{sWS}:{sWS+3}], s{sKW} offen sc1", vm=("cs", 8)))
    S.chain(p + 1, lds, cap=2)
    out += S.out()
    k = 17
    mf, st, en = g1_mfmas(k, heavy)
    one = t6
    sg = [I(f"v_mfma_f32_16x16x4_f32 a[{4*i}:{4*i+3}], v{one}, v{vS+i}, 0", needs=[("st", 0), ("st", 1)]) for i in range(4)]
    ins = en[1] + 1
    mf = mf[:ins] + sg + mf[ins:]
    for d in (st, en):
        for t in d:
            if d[t] >= ins: d[t] += 4
    S = Sched(mf)
    S.fix(-1, W(lg=[("B", k, b) for b in range(8)] + [("A", k, 0, 1)]))
    r7 = a_reads(7, k)
    S.fix(0, r7[0]); S.fix(1, r7[1])
    S.fix(2, f"v_mov_b32 v{one}, 1.0")
    S.fix(3, f"s_mul_i32 s{sW9K}, s{sW}, 9216")
    S.fix(4, W(vm=["fl_nonce"]), f"v_readfirstlane_b32 s{sNonce}, v{vR2}")
    S.fix(5, f"s_cmp_lg_u32 s{sNonce}, 0", f"s_cbranch_scc0 L_nonce_{tg}", f"L_nonce_{tg}_r:")
    OL.append(as_items(f"""
    L_nonce_{tg}:
    s_mov_b32 s{sSpin}, 0x40000
    L_nonce_{tg}_l:
    s_sleep 2
    global_load_dword v{vFlag}, v{vZero}, s[{pDBG}:{pDBG+1}] offset:8 sc1
    s_waitcnt vmcnt(0)
    v_readfirstlane_b32 s{sNonce}, v{vFlag}
    s_sub_u32 s{sSpin}, s{sSpin}, 1
    s_cbranch_scc1 L_nonce_{tg}_r
    s_cmp_lg_u32 s{sNonce}, 0
    s_cbranch_scc0 L_nonce_{tg}_l
    s_branch L_nonce_{tg}_r
    """))
    S.fix(9, W(vm=sh_tags(9) + pw_tags(18), lg=[("A", k, 7, 1)]), "s_barrier")
    if heavy: S.fix(st["x"] - 1, W(vm=[("M", k)]))
    S.fix(ins - 1, W(vm=[("st", 1), ("cs", 8)]))
    tb = as_items(f"""
    v_and_b32 v{t1}, 15, v{L}
    v_lshlrev_b32 v{t2}, 2, v{t1}
    v_add_u32 v{t2}, s{sW}, v{t2}
    v_cmp_lt_u32 vcc, 15, v{L}
    s_mul_i32 s{sT0}, s{sRB}, 144
    s_mul_i32 s{sT1}, s{sKQ}, 36
    v_cndmask_b32 v{t1}, v{t1}, v{t2}, vcc
    s_add_u32 s{sT0}, s{sT0}, s{sT1}
    s_mov_b32 s{sT2}, 0x01030200
    """)
    for T in range(3):
        tb += as_items(f"""
        v_add_u32 v{t2}, {12*T}, v{t1}
        v_mul_u32_u24 v{t3}, 57, v{t2}
        v_lshrrev_b32 v{t3}, 9, v{t3}
        v_mul_u32_u24 v{t4}, 9, v{t3}
        v_sub_u32 v{t2}, v{t2}, v{t4}
        v_lshlrev_b32 v{t3}, 3, v{t3}
        v_bfe_u32 v{t3}, s{sT2}, v{t3}, 8
        v_xor_b32 v{t3}, s{sJQ}, v{t3}
        v_mad_u32_u24 v{t2}, v{t3}, 9, v{t2}
        v_add_u32 v{t3}, s{sT0}, v{t2}
        v_lshlrev_b32 v{t3}, 13, v{t3}
        v_add_u32 v{t2}, s{sT1}, v{t2}
        v_mul_u32_u24 v{t2}, 36864, v{t2}
        v_cndmask_b32 v{vTab[T]}, v{t3}, v{t2}, vcc
        """)
    tb += as_items(f"v_mov_b32 v{vTab[3]}, {OOB}")
    n0 = 9 + 14
    ps = S.chain(5, tb[:n0], cap=2, sep=0, step=0.75)
    p0 = ps[-1] + 1
    rl = [f"v_readlane_b32 s{sHo+s}, v{vTab[0]}, {16+s}" for s in range(3)]
    pr = S.chain(p0, rl, cap=2, sep=0)
    seq = wd_dmas(0, f"s{sHo}") + wd_dmas(1, f"s{sHo+1}") + wd_dmas(2, f"s{sHo+2}")
    S.chain(max(pr[-1] + 4, 10), seq, cap=2, step=(S.n - 2 - pr[-1] - 4) / len(seq))
    stc = []
    m_, q_ = [vS, vS + 2], [vS + 1, vS + 3]
    stc += as_items(f"s_mov_b32 s{sKW}, 0x3ae38e39\ns_mov_b32 s{sDW}, 0x3727c5ac")
    for b in range(2):
        stc += as_items(f"v_accvgpr_read_b32 v{m_[b]}, a{8*b}\nv_accvgpr_read_b32 v{q_[b]}, a{8*b+4}")
    seqs = []
    for b in range(2):
        m, q = m_[b], q_[b]
        seqs.append(as_items(f"""
        v_mul_f32 v{m}, s{sKW}, v{m}
        v_mul_f32 v{q}, s{sKW}, v{q}
        v_fma_f32 v{q}, -v{m}, v{m}, v{q}
        v_max_f32 v{q}, 0, v{q}
        v_cvt_pk_bf16_f32 v{q}, v{q}, v{q}
        v_cvt_pk_bf16_f32 v{m}, -v{m}, -v{m}
        v_lshlrev_b32 v{q}, 16, v{q}
        v_add_f32 v{q}, s{sDW}, v{q}
        v_cvt_pk_bf16_f32 v{q}, v{q}, v{q}
        v_lshlrev_b32 v{q}, 16, v{q}
        v_sqrt_f32 v{q}, v{q}
        """))
    for x, y in zip(*seqs): stc += [x, y]
    for b in range(2): stc += as_items(f"v_cvt_pk_bf16_f32 v{q_[b]}, v{q_[b]}, v{q_[b]}")
    for b in range(2): stc += as_items(f"v_lshlrev_b32 v{q_[b]}, 16, v{q_[b]}")
    for b in range(2): stc += as_items(f"v_rcp_f32 v{q_[b]}, v{q_[b]}")
    stc += as_items(f"""
    v_and_b32 v{vBr}, 15, v{L}
    s_lshl_b32 s{sDX}, s{sW}, 9
    s_add_u32 s{sDX}, s{sDX}, {STAT}
    v_lshl_add_u32 v{vBr+1}, v{vBr}, 4, s{sDX}
    s_lshl_b32 s{sDelta}, s{sW}, 7
    s_add_u32 s{sDelta}, s{sDelta}, {STAT+2048}
    v_lshl_add_u32 v{vBr+2}, v{vBr}, 2, s{sDelta}
    ds_write2_b32 v{vBr+1}, v{m_[0]}, v{vZero} offset0:0 offset1:1
    ds_write2_b32 v{vBr+1}, v{vZero}, v{m_[0]} offset0:2 offset1:3
    ds_write2_b32 v{vBr+1}, v{m_[1]}, v{vZero} offset0:64 offset1:65
    ds_write2_b32 v{vBr+1}, v{vZero}, v{m_[1]} offset0:66 offset1:67
    ds_write2_b32 v{vBr+2}, v{q_[0]}, v{q_[1]} offset0:0 offset1:16
    v_mul_f32 v{vR2}, v{q_[0]}, v{q_[0]}
    v_mul_f32 v{vR2b}, v{q_[1]}, v{q_[1]}
    """)
    ps = S.chain(ins + 3 + 6, stc, cap=2, sep=0, step=0.7)
    pb = ps[-1] + 3
    S.fix(pb, "s_waitcnt lgkmcnt(0)", "s_barrier")
    rd = []
    for bb in range(4):
        rd.append(f"v_xor_b32 v{vBr+3}, {bb*512}, v{vBr+1}")
        for x in range(2):
            rd.append(I(f"ds_read_b128 a[{8*bb+4*x}:{8*bb+4*x+3}], v{vBr+3} offset:{256*x}", lg=("nm", 2 * bb + x)))
    S.chain(pb + 1, rd, cap=3, sep=0)
    cs = []
    for t in range(9):
        x = vCS + t
        cs += [I(f"v_cvt_pk_bf16_f32 v{t5}, v{x}, v{x}", needs=[("cs", t)]), f"v_lshlrev_b32 v{t5}, 16, v{t5}",
               f"v_sub_f32 v{t5}, v{x}, v{t5}", f"v_cvt_pk_bf16_f32 v{x}, v{x}, v{t5}"]
    cs.append(f"v_mov_b32 v{vCS+9}, 0")
    S.chain(ins, cs + tb[n0:], cap=2, sep=0, step=0.75)
    out += S.out()
    return out

def publish_side():
    L = vLane
    t = vCS
    P = as_items(f"""
    L_pub:
    s_nop 7
    """)
    for i in range(4): P += as_items(f"v_accvgpr_read_b32 v{t+i}, a{aSide+i}")
    P += as_items(f"v_accvgpr_read_b32 v{t+4}, a{aSide+4}")
    for i in range(4): P += as_items(f"v_accvgpr_read_b32 v{vT+i}, a{aSide+8+i}")
    for i in range(4): P += as_items(f"v_add_f32_dpp v{t+i}, v{t+i}, v{t+i} row_ror:8 row_mask:0xf bank_mask:0xf")
    P += as_items(f"""
    v_and_b32 v{t+6}, 3, v{L}
    v_cmp_eq_u32 vcc, 1, v{t+6}
    v_lshrrev_b32 v{t+7}, 4, v{L}
    v_and_b32 v{t+8}, 15, v{L}
    v_cndmask_b32 v{t+5}, v{vT}, v{vT+1}, vcc
    v_cmp_eq_u32 vcc, 2, v{t+6}
    v_lshlrev_b32 v{t+9}, 5, v{t+8}
    v_lshl_add_u32 v{t+9}, v{t+7}, 4, v{t+9}
    v_cndmask_b32 v{t+5}, v{t+5}, v{vT+2}, vcc
    v_cmp_eq_u32 vcc, 3, v{t+6}
    v_and_b32 v{t+6}, 0x28, v{L}
    v_mov_b32 v{vT}, {OOB}
    v_cndmask_b32 v{t+5}, v{t+5}, v{vT+3}, vcc
    v_cmp_eq_u32 vcc, 0, v{t+6}
    v_lshrrev_b32 v{t+6}, 2, v{t+8}
    v_lshlrev_b32 v{t+8}, 3, v{t+8}
    v_cndmask_b32 v{t+9}, v{vT}, v{t+9}, vcc
    v_cmp_eq_u32 vcc, v{t+6}, v{t+7}
    s_lshl_b32 s{sT0}, s{sRB}, 2
    s_add_u32 s{sT0}, s{sT0}, s{sKQ}
    v_cndmask_b32 v{t+8}, v{vT}, v{t+8}, vcc
    s_lshl_b32 s{sT0}, s{sT0}, 8
    s_lshr_b32 s{sT1}, s{sW}, 1
    s_lshl_b32 s{sT1}, s{sT1}, 7
    s_add_u32 s{sT0}, s{sT0}, s{sT1}
    s_and_b32 s{sT1}, s{sW}, 1
    s_lshl_b32 s{sT1}, s{sT1}, 14
    s_add_u32 s{sT0}, s{sT0}, s{sT1}
    s_add_u32 s{sT0}, s{sT0}, {WS_ST}
    s_cmp_eq_u32 s{sJQ}, 3
    s_cselect_b32 s{sT0}, s{sT0}, {OOB}
    buffer_store_dwordx4 v[{t}:{t+3}], v{t+9}, s[{sWS}:{sWS+3}], s{sHV} offen sc1
    buffer_store_dwordx2 v[{t+4}:{t+5}], v{t+8}, s[{sWS}:{sWS+3}], s{sT0} offen sc1
    s_mov_b32 s{sCSo}, {OOB}
    v_mov_b32 v{t+6}, 0
    v_mov_b32 v{t+7}, 1
    s_waitcnt vmcnt(0)
    s_barrier
    s_cmp_lg_u32 s{sW}, 0
    s_cbranch_scc1 L_pub_r
    s_mov_b64 exec, 1
    global_atomic_add v{t+6}, v{t+7}, s[{pDBG}:{pDBG+1}] sc1
    s_mov_b64 exec, -1
    s_branch L_pub_r
    """)
    return P

def signal(flagbase, tag):
    return as_items([f"s_lshl_b32 s{sT0}, s2, 7", f"s_add_u32 s{sT0}, s{sT0}, {flagbase}", f"v_mov_b32 v{vT+6}, s{sNonce}",
                     I(f"buffer_store_dword v{vT+6}, v{vSig}, s[{sWS}:{sWS+3}], s{sT0} offen sc1", vm=tag)])
def uncounted(items):
    for it in items:
        if is_vmem(it.text): it.text = " " + it.text
    return items

vG2 = 56
aH = 100
vA2 = vAr
vHl = vAr + 1
def g2acc(p, nn): return vG2 + (2 * p + nn) * 4
def h_loads(q, soff):
    s = aH + (q % 12) * 8
    return [I(f"buffer_load_dwordx4 a[{s+4*n}:{s+4*n+3}], v{vHl}, s[{sWS}:{sWS+3}], {soff} offen{' offset:1024' if n else ''} sc1", vm=("h", q, n)) for n in range(2)]
def a2_reads(p, q):
    stage = q // 4
    off = (stage % 3) * G2SLOT + (q % 4) * 9216 + p * 32
    if off >= 55296: addr, off = vA2 + 2, off - 55296
    else: addr = vA2
    return [I(f"ds_read_b64_tr_b16 a[{aA+4*p+2*h}:{aA+4*p+2*h+1}], v{addr} offset:{off+4608*h}", lg=("A2", q, p, h), needs=wd_tags(stage)) for h in range(2)]

def epilogue1(heavy, OL):
    tg = "h" if heavy else "l"
    L = vLane
    P = []; a = P.append
    a(stamp(2))
    vH, vHm = vWo, vMg
    vHm = vBr
    sQ0, sQ1, sQm = sKW, sDW, sDX
    t1, t2 = vT + 4, vT + 5
    pre = as_items(f"""
    s_mul_i32 s{sT0}, s{sRB}, 144
    s_mul_i32 s{sT1}, s{sJ}, 9
    s_add_u32 s{sT0}, s{sT0}, s{sT1}
    s_and_b32 s{sT1}, s{sJ}, 1
    s_xor_b32 s{sT2}, s{sT1}, 1
    s_lshl_b32 s{sT2}, s{sT2}, 3
    s_add_u32 s{sQm}, s{sT0}, s{sT2}
    s_lshl_b32 s{sQm}, s{sQm}, 13
    s_add_u32 s{sT0}, s{sT0}, s{sT1}
    s_lshl_b32 s{sT1}, s{sW}, 1
    s_add_u32 s{sQ0}, s{sT0}, s{sT1}
    s_lshl_b32 s{sQ0}, s{sQ0}, 13
    s_add_u32 s{sQ1}, s{sQ0}, 8192
    s_lshl_b32 s{sT0}, s{sW}, 11
    v_lshl_add_u32 v{vH}, v{L}, 4, s{sT0}
    v_xor_b32 v{vH+1}, 0x800, v{vH}
    v_xor_b32 v{vH+2}, 0x1000, v{vH}
    v_xor_b32 v{vH+3}, 0x1800, v{vH}
    v_mov_b32 v{vHl}, v{vH}
    v_lshrrev_b32 v{t1}, 5, v{L}
    v_and_b32 v{t2}, 31, v{L}
    v_lshlrev_b32 v{t2}, 4, v{t2}
    v_lshl_add_u32 v{t2}, v{t1}, 10, v{t2}
    s_and_b32 s{sT1}, s{sW}, 1
    s_lshl_b32 s{sT1}, s{sT1}, 9
    s_lshr_b32 s{sT2}, s{sW}, 1
    s_lshl_b32 s{sT2}, s{sT2}, 3
    s_add_u32 s{sT1}, s{sT1}, s{sT2}
    s_add_u32 s{sT1}, s{sT1}, s{sT0}
    v_add_u32 v{vHm}, s{sT1}, v{t2}
    v_xor_b32 v{vHm+1}, 0x800, v{vHm}
    v_xor_b32 v{vHm+2}, 0x1000, v{vHm}
    v_xor_b32 v{vHm+3}, 0x1800, v{vHm}
    """)
    def corr(t, b):
        cs = vCS + (t & ~1)
        nm = 4 * b + 2 * (t & 1)
        return I(f"v_mfma_f32_16x16x16_bf16 {acc(t,b)}, v[{cs}:{cs+1}], a[{nm}:{nm+1}], {acc(t,b)}", needs=[("nm", b)])
    units = [(qq, b) for qq in range(2) for b in range(8)] + [("m", bb) for bb in range(4)]
    def ucorr(u):
        if u[0] == "m": return [corr(8, 2 * u[1]), corr(8, 2 * u[1] + 1)]
        return [corr(4 * u[0] + x, u[1]) for x in range(4)]
    def uvalu(u):
        o = []
        if u[0] == "m":
            bb = u[1]
            r0, r1 = acc_loc(8, 2 * bb)[1], acc_loc(8, 2 * bb + 1)[1]
            o += [f"v_permlane32_swap_b32 v{r0+x}, v{r1+x}" for x in range(4)]
            o += [f"v_max_f32 v{r0+x}, 0, v{r0+x}" for x in range(4)]
            o += [f"v_mul_f32 v{r0+x}, v{r0+x}, v{r1+x}" for x in range(4)]
            o += [f"v_cvt_pk_bf16_f32 v{r0+p}, v{r0+2*p}, v{r0+2*p+1}" for p in range(2)]
            o.append(I(f"buffer_store_dwordx2 v[{r0}:{r0+1}], v{vHm+bb}, s[{sWS}:{sWS+3}], s{sQm} offen sc1", vm=("hs", u)))
            return o
        qq, b = u
        H = acc_loc(4 * qq, b)[1]
        for half in range(2):
            rg = acc_loc(4 * qq + 2 * half, b)[1]
            ku, ru = acc_loc(4 * qq + 2 * half + 1, b)
            o += [f"v_max_f32 v{rg+x}, 0, v{rg+x}" for x in range(4)]
            if ku == "a":
                o += [f"v_accvgpr_read_b32 v{vT+x}, a{ru+x}" for x in range(4)]
                ru = vT
            o += [f"v_mul_f32 v{rg+x}, v{rg+x}, v{ru+x}" for x in range(4)]
            o += [f"v_cvt_pk_bf16_f32 v{H+2*half+p}, v{rg+2*p}, v{rg+2*p+1}" for p in range(2)]
        o.append(I(f"buffer_store_dwordx4 v[{H}:{H+3}], v{vH+(b>>1)}, s[{sWS}:{sWS+3}], s{sQ1 if qq else sQ0} offen{' offset:1024' if b & 1 else ''} sc1", vm=("hs", u)))
        return o
    a(W(lg=[("nm", 7)]))
    c0 = ucorr(units[0]) + ucorr(units[1])
    k = 0
    for i, m in enumerate(c0):
        a(m); a(pre[k:k + 4]); k += 4
    a(pre[k:])
    for i, u in enumerate(units):
        va = uvalu(u)
        nx = ucorr(units[i + 2]) if i + 2 < len(units) else []
        step = max(1, len(va) // (len(nx) + 1))
        for jj, x in enumerate(va):
            a(x)
            if nx and (jj + 1) % step == 0: a(nx.pop(0))
        a(nx)
    a(stamp(3))
    hs_tags = [("hs", u) for u in units]
    Z = []; z = Z.append
    z(f"""
    v_lshrrev_b32 v{vT}, 2, v{L}
    v_mul_u32_u24 v{vT}, 288, v{vT}
    v_and_b32 v{vT+1}, 3, v{L}
    v_lshl_add_u32 v{vA2}, v{vT+1}, 3, v{vT}
    v_add_u32 v{vA2+2}, 55296, v{vA2}
    """)
    D1, D2 = [], []
    if heavy:
        vR, vZ, vF, vP, vQ = 128, 160, 176, 128, 240
        g1, sgn, fa = vT + 2, vT + 3, vT + 4
        d = D1.append
        d(f"""
        v_lshrrev_b32 v{g1}, 4, v{L}
        s_lshl_b32 s{sT0}, s{sW}, 7
        s_add_u32 s{sT0}, s{sT0}, {STAT+2048}
        v_lshl_add_u32 v{fa}, v{g1}, 4, s{sT0}
        """)
        for bb in range(4):
            d(f"v_xor_b32 v{fa+1}, {bb*128}, v{fa}")
            for x in range(2): d(I(f"ds_read_b128 v[{vR+8*bb+4*x}:{vR+8*bb+4*x+3}], v{fa+1} offset:{64*x}", lg=("r", 2 * bb + x)))
        d(f"""
        v_bfe_u32 v{fa}, v{L}, 2, 2
        v_lshl_add_u32 v{fa}, v{g1}, 2, v{fa}
        v_lshlrev_b32 v{fa}, 6, v{fa}
        v_and_b32 v{fa+1}, 1, v{g1}
        v_lshl_add_u32 v{fa}, v{fa+1}, 5, v{fa}
        v_and_b32 v{fa+1}, 3, v{L}
        v_lshl_add_u32 v{fa}, v{fa+1}, 3, v{fa}
        s_lshl_b32 s{sT0}, s{sW}, 11
        s_add_u32 s{sT0}, s{sT0}, {FRE}
        v_add_u32 v{fa}, s{sT0}, v{fa}
        """)
        for bb in range(4):
            for mt in range(2):
                d(f"v_xor_b32 v{fa+1}, {bb*2048 + mt*32}, v{fa}")
                for part in range(2):
                    f = vF + ((bb * 2 + mt) * 2 + part) * 4
                    for h in range(2):
                        d(I(f"ds_read_b64_tr_b16 v[{f+2*h}:{f+2*h+1}], v{fa+1} offset:{part*(FIM-FRE)+1024*h}", lg=("F", bb, mt, part, h), needs=[("F", part, 0), ("F", part, 1)]))
            if bb == 0:
                d(f"""
                v_and_b32 v{sgn}, 8, v{L}
                v_cmp_eq_u32 vcc, 0, v{sgn}
                v_mov_b32 v{sgn}, 1.0
                """)
                d(W(lg=[("r", 7)]))
                d(f"v_cndmask_b32 v{sgn}, v{sgn}, -1.0, vcc".replace("v_cndmask_b32", "v_cndmask_b32_e64"))
            for b in (2 * bb, 2 * bb + 1):
                for x in range(4): d(f"v_accvgpr_read_b32 v{vQ+x}, a{aZ+4*b+x}")
                for x in range(4): d(I(f"v_mul_f32 v{vQ+x}, v{vQ+x}, v{vR+4*b+x}", needs=[("r", b)]))
                for p in range(2): d(f"v_cvt_pk_bf16_f32 v{vZ+2*b+p}, v{vQ+2*p}, v{vQ+2*p+1}")
        d = D2.append
        d(W(lg=[("F", 3, 1, 1, 1)]))
        for bb in range(4):
            q = vQ + (bb & 1) * 8
            for mt in range(2):
                f = vF + (bb * 2 + mt) * 8
                nd = [("F", bb, mt, 1, 1)]
                d(I(f"v_mfma_f32_16x16x32_bf16 v[{vP+(bb*2+mt)*4}:{vP+(bb*2+mt)*4+3}], v[{f}:{f+3}], v[{vZ+4*bb}:{vZ+4*bb+3}], 0", needs=nd))
                d(I(f"v_mfma_f32_16x16x32_bf16 v[{q+mt*4}:{q+mt*4+3}], v[{f+4}:{f+7}], v[{vZ+4*bb}:{vZ+4*bb+3}], 0", needs=nd))
            if bb == 0:
                d(f"""
                s_and_b32 s{sT0}, s{sW}, 1
                s_cmp_eq_u32 s{sT0}, 1
                s_mov_b32 s{sT0}, 0x03020100
                s_cselect_b32 s{sT0}, 0x01000302, s{sT0}
                s_add_u32 s{sT1}, s{sT0}, 0x04040404
                s_bitcmp1_b32 s{sW}, 1
                s_cselect_b32 s{sT2}, s{sT1}, s{sT0}
                s_cselect_b32 s{sT3}, s{sT0}, s{sT1}
                """)
            if bb >= 1:
                pb, pq = bb - 1, vQ + ((bb - 1) & 1) * 8
                d("s_nop 3")
                for mt in range(2):
                    for x in range(4):
                        d(f"v_fmac_f32_dpp v{vP+(pb*2+mt)*4+x}, v{pq+mt*4+x}, v{sgn} row_ror:8 row_mask:0xf bank_mask:0xf")
        d(f"""
        v_mul_u32_u24 v{fa}, {4*4608}, v{g1}
        v_and_b32 v{fa+1}, 7, v{L}
        v_lshl_add_u32 v{fa}, v{fa+1}, 4, v{fa}
        v_and_b32 v{fa+1}, 8, v{L}
        v_add_u32 v{fa}, v{fa+1}, v{fa}
        s_mul_i32 s{sT0}, s{sRB}, {32*4608}
        s_lshl_b32 s{sT1}, s{sHV}, 2
        s_add_u32 s{sT1}, s{sT1}, s{sW}
        s_lshl_b32 s{sT1}, s{sT1}, 7
        s_add_u32 s{sT0}, s{sT0}, s{sT1}
        s_add_u32 s{sT0}, s{sT0}, {WS_U}
        """)
        for mt in range(2):
            for x in range(4):
                d(f"v_fmac_f32_dpp v{vP+(6+mt)*4+x}, v{vQ+8+mt*4+x}, v{sgn} row_ror:8 row_mask:0xf bank_mask:0xf")
        kk = 0
        for mt in range(2):
            for x in range(4):
                dd = vF + 4 * kk; kk += 1
                p = [vP + (bb * 2 + mt) * 4 + x for bb in range(4)]
                d(f"""
                v_cvt_pk_bf16_f32 v{dd}, v{p[0]}, v{p[1]}
                v_cvt_pk_bf16_f32 v{dd+1}, v{p[2]}, v{p[3]}
                s_add_u32 s{sT1}, s{sT0}, {(16*mt+x)*4608}
                v_perm_b32 v{dd+2}, v{dd+1}, v{dd}, s{sT2}
                v_perm_b32 v{dd+3}, v{dd+1}, v{dd}, s{sT3}
                """)
                d(I(f"buffer_store_dwordx2 v[{dd+2}:{dd+3}], v{fa}, s[{sWS}:{sWS+3}], s{sT1} offen sc1", vm=("us", kk)))
    for i in range(72): z(f"v_mov_b32 v{vG2+i}, 0")
    a(Z); a(D1)
    for s in range(9): a(f"v_readlane_b32 s{60 + s if s < 2 else 64 + s}, v{vTab[0]}, {s}")
    own = [60, 61] + list(range(66, 73))
    a("s_waitcnt vmcnt(0)"); a("s_barrier")
    a(signal(WS_FH, "sigh"))
    def fb(d, x):
        return f"s_xor_b32 s{sT0}, s2, {x}\ns_lshl_b32 s{sT0}, s{sT0}, 7\ns_add_u32 s{sT0}, s{sT0}, {WS_FH}\ns_add_u32 s{d}, s{pWS}, s{sT0}\ns_addc_u32 s{d+1}, s{pWS+1}, 0"
    a(fb(sFb, 16))
    a(I(f"global_load_dword v{vFlag}, v{vZero}, s[{sFb}:{sFb+1}] sc1", vm="fl1"))
    for q in range(9): a(h_loads(q, f"s{own[q]}"))
    a(stamp(4))
    a(D2)
    for s_ in range(3): a(f"v_readlane_b32 s{sHo+s_}, v{vTab[0]}, {9+s_}")
    a(flag_check(f"L_f1_{tg}", f"s{sNonce}", "fl1"))
    OL.append(poll_slow(f"L_f1_{tg}", sFb, 0, f"s{sNonce}"))
    a(fb(sFb, 24)); a(fb(sMk0, 8))
    for q in range(9, 12): a(h_loads(q, f"s{sHo+q-9}"))
    a(f"""
    s_add_u32 s{sMk1}, s{pDBG}, 128
    s_addc_u32 s{sMk1+1}, s{pDBG+1}, 0
    s_mov_b32 s{sFexp}, s{sNonce}
    s_mov_b32 s{sCnt}, 2
    """)
    if heavy:
        a(f"v_mov_b32 v{vT}, 1")
        a(W(vm=[("us", 8)])); a("s_barrier")
        a(f"buffer_atomic_add v{vT}, v{vSig}, s[{sSJ}:{sSJ+3}], 0 offen offset:128 sc1")
    for p in range(9): a(a2_reads(p, 0))
    a(stamp(5))
    return P

def g2_iter(it, tg):
    mf = []
    for kk in range(12):
        q = 12 * it + kk
        for p in range(9):
            for nn in range(2):
                c = g2acc(p, nn); h = aH + kk * 8 + 4 * nn
                mf.append(I(f"v_mfma_f32_16x16x32_bf16 v[{c}:{c+3}], {areg(p)}, a[{h}:{h+3}], v[{c}:{c+3}]",
                            needs=[("A2", q, p, 0), ("A2", q, p, 1), ("h", q, nn)]))
    S = Sched(mf)
    for kk in range(12):
        q = 12 * it + kk; b = 18 * kk
        bd = kk % 4 == 3
        if kk > 0: S.fix(b + 0, a2_reads(8, q)[1])
        S.fix(b - 1, W(vm=[("h", q, 1)], lg=[("A2", q, 2, 1)]))
        if bd:
            S.fix(b + 5, W(vm=wd_tags(q // 4 + 1), lg=[("A2", q, 8, 1)]), "s_barrier")
        else:
            S.fix(b + 5, W(lg=[("A2", q, 5, 1)]))
            S.fix(b + 11, W(lg=[("A2", q, 8, 1)]))
        rs = []
        for p in range(9): rs += [(p, x) for x in a2_reads(p, q + 1)]
        if kk < 11: rs = rs[:-1]
        pos = b
        for i, (p, x) in enumerate(rs):
            lo = max(b + 2 * p + 1 + (i & 1), b + 6 + (i * 2) // 3 if bd else 0)
            pos = S.fix(min(lo, b + 17), x)
    S.fix(1, I(f"global_load_dword v{vFlag}, v{vZero}, s[{sFb}:{sFb+1}] sc1", vm=("fl", it)))
    S.fix(18 * 3 - 4, flag_check(f"L_fl_{tg}", f"s{sFexp}", ("fl", it)))
    S.chain(18 * 4 + 2, [[f"s_cmp_eq_u32 s{sCnt}, 2", f"s_cselect_b64 s[{sFb}:{sFb+1}], s[{sMk0}:{sMk0+1}], s[{sMk1}:{sMk1+1}]"],
                         f"s_cselect_b32 s{sFexp}, s{sNonce}, 144"], cap=2, sep=0, hi=18 * 4 + 3)
    for kk in range(12):
        q = 12 * it + kk; b = 18 * kk
        so = sHo + kk % 2
        S.put(b + 2, f"v_readlane_b32 s{so}, v{vTab[1]}, {kk}", cap=2, hi=b + 9)
        hl = h_loads(q + 12, f"s{so}")
        if kk < 11:
            S.put(b + 18, hl[0], cap=2, hi=b + 20); S.put(b + 21, hl[1], cap=2, hi=b + 22)
        else:
            S.fix(b + 17, hl)
    for kk in (3, 7, 11):
        q = 12 * it + kk; b = 18 * kk
        S.put(b - 8, f"v_readlane_b32 s{sWo}, v{vTab[1]}, {16 + kk // 4}", cap=2, hi=b - 3)
        seq = wd_dmas(q // 4 + 3, f"s{sWo}")
        if kk < 11: S.chain(b + 19, seq, cap=2, step=4.0, hi=b + 62)
        else: S.chain(b + 6, seq, cap=3, step=1.0)
    out = S.out()
    out += as_items(f"""
    v_mov_b32 v{vTab[1]}, v{vTab[2]}
    v_mov_b32 v{vTab[2]}, v{vTab[3]}
    s_sub_u32 s{sCnt}, s{sCnt}, 1
    s_cbranch_scc0 L_g2_{tg}
    """)
    return out

def final(tg, OL):
    L = vLane
    P = []; a = P.append
    a(stamp(6))
    t = [vT + i for i in range(6)]
    a(f"""
    s_lshl_b32 s{sT0}, s2, 2
    s_add_u32 s{sT0}, s{sT0}, s{sW}
    s_lshl_b32 s{sT0}, s{sT0}, 13
    s_add_u32 s{sKW}, s{sT0}, {WS_PART}
    s_add_u32 s{sDW}, s{sKW}, 4096
    s_add_u32 s{sDX}, s{sKW}, 8192
    v_lshlrev_b32 v{vHl}, 4, v{L}
    s_nop 0
    """)
    for p in range(2, 9):
        c = g2acc(p, 0)
        for x in range(4): a(f"v_cvt_pk_bf16_f32 v{c+x}, v{c+2*x}, v{c+2*x+1}")
        so, off = [(sKW, p * 1024), (sDW, (p - 4) * 1024), (sDX, 0)][p // 4]
        a(I(f"buffer_store_dwordx4 v[{c}:{c+3}], v{vHl}, s[{sWS}:{sWS+3}], s{so} offen offset:{off} sc1", vm=("ps", p)))
    aU, aF = 100, 148
    vX = 128
    vY = 140
    vPp = 164
    g, n = t[0], t[1]
    vUo, vFr, vFi, vXa = vWo, vMg, vBr, vWd
    a(f"""
    v_lshrrev_b32 v{g}, 4, v{L}
    v_and_b32 v{n}, 15, v{L}
    s_lshl_b32 s{sT0}, s{sRB}, 2
    s_add_u32 s{sT0}, s{sT0}, s{sW}
    s_and_b32 s{sT1}, s{sT0}, 31
    s_sub_u32 s{sT2}, 32, s{sT1}
    s_and_b32 s{sT2}, s{sT2}, 31
    s_cmp_ge_u32 s{sJQ}, 2
    s_cselect_b64 s[{sMk1}:{sMk1+1}], -1, 0
    s_cselect_b32 s{sT2}, s{sT2}, s{sT1}
    s_mul_i32 s{sT2}, s{sT2}, 4608
    s_add_u32 s{sHo}, s{sT2}, {WS_U}
    s_mul_i32 s{sT2}, s{sJQ}, 144
    s_lshl_b32 s{sT3}, s{sKQ}, 5
    s_add_u32 s{sT3}, s{sT3}, s{sT2}
    v_add_u32 v{t[2]}, s{sT3}, v{n}
    v_subrev_u32 v{t[3]}, 1, v{t[2]}
    v_sub_u32 v{t[4]}, 575, v{t[2]}
    v_cndmask_b32 v{t[3]}, v{t[3]}, v{t[4]}, s[{sMk1}:{sMk1+1}]
    v_mul_u32_u24 v{t[4]}, {32*4608}, v{g}
    v_lshl_add_u32 v{vUo}, v{t[3]}, 4, v{t[4]}
    s_cmp_ge_u32 s{sJQ}, 2
    s_movk_i32 s{sCnt}, 256
    s_cselect_b32 s{sCnt}, -256, s{sCnt}
    v_add_u32 v{vUo+1}, s{sCnt}, v{vUo}
    s_lshl_b32 s{sWo}, s{sKQ}, 5
    s_sub_u32 s{sWo}, 128, s{sWo}
    s_mul_i32 s{sWo}, s{sWo}, s{sCnt}
    s_ashr_i32 s{sWo}, s{sWo}, 4
    v_add_u32 v{vUo+2}, s{sWo}, v{vUo}
    v_cmp_eq_u32 vcc, 0, v{t[2]}
    v_mov_b32 v{t[4]}, {OOB}
    s_add_u32 s{sHo+1}, s{sHo}, 589824
    v_cndmask_b32 v{vUo}, v{vUo}, v{t[4]}, vcc
    s_add_u32 s{sHo+2}, s{sHo}, {2*589824}
    s_add_u32 s{sWo}, s{sHo}, {3*589824}
    """)
    uso = [sHo, sHo + 1, sHo + 2, sWo]
    for u in range(3):
        for ks in range(4):
            r = aU + (u * 4 + ks) * 4
            a(I(f"buffer_load_dwordx4 a[{r}:{r+3}], v{vUo+u}, s[{sWS}:{sWS+3}], s{uso[ks]} offen sc1", vm=("U", u, ks)))
    a(f"""
    s_lshr_b32 s{sT2}, s{sRB}, 3
    s_cmp_lg_u32 s{sT1}, 0
    s_cselect_b32 s{sT1}, 63, 64
    v_lshl_add_u32 v{t[2]}, v{n}, 1, s{sT2}
    v_lshlrev_b32 v{t[5]}, 3, v{g}
    """)
    for nn in range(2):
        a(f"""
        v_sub_u32 v{t[3]}, s{sT1}, v{t[2]}
        v_and_b32 v{t[3]}, 63, v{t[3]}
        v_cndmask_b32 v{t[3]}, v{t[2]}, v{t[3]}, s[{sMk1}:{sMk1+1}]
        v_lshl_add_u32 v{vFr+nn}, v{t[3]}, 17, v{t[5]}
        v_sub_u32 v{t[3]}, 64, v{t[3]}
        v_and_b32 v{t[3]}, 63, v{t[3]}
        v_lshl_add_u32 v{vFi+nn}, v{t[3]}, 17, v{t[5]}
        v_add_u32 v{t[2]}, 32, v{t[2]}
        """)
        for ks in range(4):
            r = aF + (nn * 4 + ks) * 4
            a(I(f"buffer_load_dwordx2 a[{r}:{r+1}], v{vFr+nn}, s[{sDR}:{sDR+3}], 0 offen offset:{32*ks}", vm=("F2", nn, ks, 0)))
            a(I(f"buffer_load_dwordx2 a[{r+2}:{r+3}], v{vFi+nn}, s[{sDI}:{sDI+3}], 0 offen offset:{32*ks}", vm=("F2", nn, ks, 1)))
    a(f"""
    s_mul_i32 s{sT0}, s{sT0}, 1152
    s_lshl_b32 s{sT1}, s{sT3}, 1
    s_add_u32 s{sT1}, s{sT1}, s{sT0}
    v_mul_u32_u24 v{t[2]}, 73728, v{n}
    v_add_u32 v{t[2]}, v{t[2]}, v{t[5]}
    v_add_u32 v{vXa}, s{sT1}, v{t[2]}
    v_add_u32 v{vXa+1}, {16*73728}, v{vXa}
    s_mul_i32 s{sT1}, s{sJQ}, 288
    s_add_u32 s{sT1}, s{sT1}, s{sT0}
    s_lshr_b32 s{sT2}, s{sKQ}, 1
    s_mul_i32 s{sT2}, s{sT2}, {16*73728}
    s_add_u32 s{sT1}, s{sT1}, s{sT2}
    s_and_b32 s{sT2}, s{sKQ}, 1
    s_lshl_b32 s{sT2}, s{sT2}, 2
    s_add_u32 s{sT1}, s{sT1}, s{sT2}
    s_add_u32 s{sT1}, s{sT1}, 256
    v_add_u32 v{vXa+2}, s{sT1}, v{t[2]}
    """)
    for p in range(2):
        for nn in range(2):
            r = vX + (2 * p + nn) * 2
            a(I(f"buffer_load_dwordx2 v[{r}:{r+1}], v{vXa+nn}, s[{sX}:{sX+3}], 0 offen offset:{32*p}", vm=("x", p, nn)))
    a(I(f"buffer_load_dword v{vX+8}, v{vXa+2}, s[{sX}:{sX+3}], 0 offen", vm=("x", 2)))
    a(W(vm=[("ps", 8)])); a("s_barrier")
    a(stamp(7))
    a(signal(WS_FP, "sigp"))
    a(W(vm=[("F2", 1, 3, 1)]))
    for u in range(3):
        for nn in range(2):
            y = vY + (2 * u + nn) * 4
            for ks in range(4):
                ru, rf = aU + (u * 4 + ks) * 4, aF + (nn * 4 + ks) * 4
                a(f"v_mfma_f32_16x16x32_bf16 v[{y}:{y+3}], a[{ru}:{ru+3}], a[{rf}:{rf+3}], {0 if ks == 0 else vr(y,4)}")
    a(f"""
    v_and_b32 v{t[2]}, 3, v{L}
    v_xor_b32 v{t[2]}, s2, v{t[2]}
    v_lshlrev_b32 v{t[2]}, 7, v{t[2]}
    s_mov_b32 s{sT0}, {WS_FP}
    s_mov_b32 s{sSpin}, 0x40000
    L_pp_{tg}:
    buffer_load_dword v{vFlag}, v{t[2]}, s[{sWS}:{sWS+3}], s{sT0} offen sc1
    s_waitcnt vmcnt(0)
    v_cmp_ne_u32 vcc, s{sNonce}, v{vFlag}
    s_sub_u32 s{sSpin}, s{sSpin}, 1
    s_cbranch_scc1 L_pp_{tg}_r
    s_cbranch_vccnz L_pp_{tg}
    L_pp_{tg}_r:
    """)
    a(stamp(8))
    a(f"""
    s_sub_u32 s{sT0}, s{sKW}, {WS_PART}
    s_xor_b32 s{sT1}, s{sT0}, {1*32768}
    s_add_u32 s{sHo}, s{sT1}, {WS_PART+2048}
    s_xor_b32 s{sT1}, s{sT0}, {2*32768}
    s_add_u32 s{sHo+1}, s{sT1}, {WS_PART+4096}
    s_xor_b32 s{sT1}, s{sT0}, {3*32768}
    s_add_u32 s{sHo+2}, s{sT1}, {WS_PART+6144}
    s_lshl_b32 s{sT1}, s{sKQ}, 2
    v_add_u32 v{t[2]}, s{sT1}, v{vHl}
    """)
    for x in range(3):
        for p in range(2):
            r = vPp + (2 * x + p) * 4
            a(I(f"buffer_load_dwordx4 v[{r}:{r+3}], v{vHl}, s[{sWS}:{sWS+3}], s{sHo+x} offen offset:{1024*p} sc1", vm=("pl", x, p)))
    a(f"""
    s_add_u32 s{sHo}, s{sHo}, {8192-2048}
    s_add_u32 s{sHo+1}, s{sHo+1}, {8192-4096}
    s_add_u32 s{sHo+2}, s{sHo+2}, {8192-6144}
    """)
    for x in range(4):
        a(I(f"buffer_load_dword v{vPp+24+x}, v{t[2]}, s[{sWS}:{sWS+3}], s{sHo+x if x < 3 else sDX} offen sc1", vm=("pq", x)))
    y0, y1 = vY + 16, vY + 20
    a(f"""
    s_bitcmp1_b32 s{sKQ}, 1
    s_cselect_b64 s[{sMk0}:{sMk0+1}], -1, 0
    s_bitcmp1_b32 s{sKQ}, 0
    s_cselect_b64 s[{sMk1}:{sMk1+1}], -1, 0
    s_mov_b32 s{sT2}, 0xffff0000
    s_mov_b32 s{sT3}, 0xbfb8aa3b
    """)
    for x in range(4): a(f"v_cndmask_b32 v{y0+x}, v{y0+x}, v{y1+x}, s[{sMk0}:{sMk0+1}]")
    for x in range(2): a(f"v_cndmask_b32 v{y0+x}, v{y0+x}, v{y0+2+x}, s[{sMk1}:{sMk1+1}]")
    a(f"v_cndmask_b32 v{y0+2}, v{vR2}, v{vR2b}, s[{sMk0}:{sMk0+1}]")
    def finish(d, cnt, r2, y, xr, tmp):
        o = []
        o += [f"v_mul_f32 v{d+x}, v{d+x}, v{r2}" for x in range(cnt)]
        o += [f"v_mul_f32 v{tmp+x}, s{sT3}, v{d+x}" for x in range(cnt)]
        o += [f"v_exp_f32 v{tmp+x}, v{tmp+x}" for x in range(cnt)]
        o += [f"v_mul_f32 v{d+x}, v{d+x}, v{y+x}" for x in range(cnt)]
        o += [f"v_add_f32 v{tmp+x}, 1.0, v{tmp+x}" for x in range(cnt)]
        o += [f"v_rcp_f32 v{tmp+x}, v{tmp+x}" for x in range(cnt)]
        for x in range(cnt):
            o.append(f"v_lshlrev_b32 v{y+x}, 16, v{xr+x//2}" if x % 2 == 0 else f"v_and_b32 v{y+x}, s{sT2}, v{xr+x//2}")
        o += [f"v_fmac_f32 v{y+x}, v{d+x}, v{tmp+x}" for x in range(cnt)]
        o += [f"v_cvt_pk_bf16_f32 v{d+p}, v{y+2*p}, v{y+2*p+1}" for p in range(cnt // 2)]
        return o
    tmp = 192
    for p in range(2):
        a(W(vm=[("pl", 2, p)]) if p == 0 else W(vm=[("pl", 2, 1)]))
        for nn in range(2):
            c = g2acc(p, nn)
            for x in range(3):
                r = vPp + (2 * x + p) * 4 + 2 * nn
                a(I(f"v_lshlrev_b32 v{tmp}, 16, v{r}", needs=[("pl", x, p)]))
                a(f"""
                v_and_b32 v{tmp+1}, s{sT2}, v{r}
                v_lshlrev_b32 v{tmp+2}, 16, v{r+1}
                v_and_b32 v{tmp+3}, s{sT2}, v{r+1}
                """)
                for i in range(4): a(f"v_add_f32 v{c+i}, v{c+i}, v{tmp+i}")
            a(finish(c, 4, vR2 if nn == 0 else vR2b, vY + (2 * p + nn) * 4, vX + (2 * p + nn) * 2, tmp + 4))
            a(f"buffer_store_dwordx2 v[{c}:{c+1}], v{vXa+nn}, s[{sOUT}:{sOUT+3}], 0 offen offset:{32*p}")
    a(W(vm=[("pq", 3)]))
    c = tmp + 8
    a(f"v_lshlrev_b32 v{c}, 16, v{vPp+24}\nv_and_b32 v{c+1}, s{sT2}, v{vPp+24}")
    for x in range(1, 4):
        a(f"v_lshlrev_b32 v{tmp}, 16, v{vPp+24+x}\nv_and_b32 v{tmp+1}, s{sT2}, v{vPp+24+x}\nv_add_f32 v{c}, v{c}, v{tmp}\nv_add_f32 v{c+1}, v{c+1}, v{tmp+1}")
    a(finish(c, 2, y0 + 2, y0, vX + 8, tmp + 4))
    a(f"buffer_store_dword v{c}, v{vXa+2}, s[{sOUT}:{sOUT+3}], 0 offen")
    return P

def ts_store():
    return as_items(f"""
    s_waitcnt vmcnt(0)
    s_memtime s[100:101]
    s_memrealtime s[98:99]
    s_waitcnt lgkmcnt(0)
    v_writelane_b32 v{vTSV}, s100, 9
    v_writelane_b32 v{vTSV}, s98, 11
    s_lshl_b32 s{sT0}, s2, 2
    s_add_u32 s{sT0}, s{sT0}, s{sW}
    s_lshl_b32 s{sT0}, s{sT0}, 8
    s_add_u32 s{sT0}, s{sT0}, {WS_TS}
    v_lshlrev_b32 v0, 2, v{vLane}
    buffer_store_dword v{vTSV}, v0, s[{sWS}:{sWS+3}], s{sT0} offen
    """)

def path(heavy):
    tg = "h" if heavy else "l"
    OL = []
    p = Prog()
    pro = prologue(heavy)
    if C.ts:
        p.add("s_memrealtime s[98:99]\ns_memtime s[100:101]\ns_waitcnt lgkmcnt(0)", f"v_writelane_b32 v{vTSV}, s98, 10", f"v_writelane_b32 v{vTSV}, s100, 12")
    p.add(pro)
    p.add(f".p2align 6\nL_g1_{tg}:")
    def body(D):
        o = g1_step(2 * D, heavy)[0].out() + g1_step(2 * D + 1, heavy)[0].out()
        if not heavy: o += as_items(f"s_cmp_eq_u32 s{sCnt}, 2\ns_cbranch_scc1 L_pub\nL_pub_r:")
        o += as_items(f"s_sub_u32 s{sCnt}, s{sCnt}, 1\ns_cbranch_scc0 L_g1_{tg}")
        return o
    p.loop(8, body)
    p.add(g1_tail(heavy, OL))
    p.add(epilogue1(heavy, OL))
    p.add(f".p2align 6\nL_g2_{tg}:")
    p.loop(3, lambda it: g2_iter(it, tg))
    OL.append(poll_slow(f"L_fl_{tg}", sFb, 0, f"s{sFexp}"))
    p.add(final(tg, OL))
    if C.ts: p.add(ts_store())
    p.add("s_endpgm")
    if not heavy: OL.append(publish_side())
    return p, OL

def kernel():
    out = [f".globl {KNAME}", ".p2align 8", f".type {KNAME},@function", f"{KNAME}:"]
    out += ["s_cmp_ge_u32 s2, 256", "s_cbranch_scc1 L_end"]
    out += [f"s_and_b32 s{sT0}, s2, 3", f"s_bfe_u32 s{sT1}, s2, 0x20003", f"s_lshl_b32 s{sHV}, s{sT0}, 1", f"s_add_u32 s{sHV}, s{sHV}, s{sT1}",
            f"s_cmp_lt_u32 s{sT1}, 2", "s_cbranch_scc1 L_heavy",
            f"s_mov_b32 s{sHV}, 8", f"s_lshl_b32 s{sT0}, s{sT0}, 2", f"s_add_u32 s{sT0}, s{sT0}, s{sT1}", f"s_cmp_eq_u32 s{sT0}, 2", "s_cbranch_scc1 L_heavy"]
    errs = []
    for heavy in (False, True):
        if heavy: out.append("L_heavy:")
        p, OL = path(heavy)
        txt = p.text()
        out += txt
        errs += check_hazards(p.dyn_text(), "h" if heavy else "l")
        for o in OL:
            t = [i.text for i in as_items(o)]
            errs += check_hazards(t, "ol")
            out += t
    out += ["L_end:", "s_endpgm"]
    for e in errs: print(e)
    assert not errs
    return out

def write(fn, ts=False):
    C.ts = ts
    _nst[0] = 0
    hdr = open("recurrent_scan__spectral_fnet__glu_gated_reglu__prompt.s.ref").read().split("; Override")[0]
    txt = [hdr.rstrip(), "; @launch grid=(256,1,1) block=(256,1,1) lds=163840", '.amdgcn_target "amdgcn-amd-amdhsa--gfx950"', ".text"]
    txt += kernel()
    txt.append(KD.format(name=KNAME, vgpr=512, acc=256))
    open(fn, "w").write("\n".join(txt) + "\n")

if __name__ == "__main__":
    write("full_ts.s", ts=True)
    write("full.s", ts=False)
```

```python
import re

class I:
    __slots__ = ("text", "vm", "lg", "wvm", "wlg", "needs", "nvm", "nlg", "key", "force")
    def __init__(self, text, vm=None, lg=None, wvm=None, wlg=None, needs=None):
        self.text = text; self.vm = vm; self.lg = lg; self.wvm = wvm; self.wlg = wlg
        self.needs = needs; self.nvm = None; self.nlg = None; self.key = None

def W(vm=None, lg=None):
    return I("WAIT", wvm=list(vm) if vm is not None else None, wlg=list(lg) if lg is not None else None)

def WALL(vm=True, lg=True):
    t = "s_waitcnt" + (" vmcnt(0)" if vm else "") + (" lgkmcnt(0)" if lg else "")
    it = I(t)
    it.key = ("all", vm, lg)
    return it

def as_items(x):
    out = []
    if isinstance(x, I): return [x]
    if isinstance(x, str):
        for l in x.split("\n"):
            l = l.strip()
            if l: out.append(I(l))
        return out
    for y in x: out += as_items(y)
    return out

class Prog:
    def __init__(self):
        self.segs = []
    def add(self, *x):
        self.segs.append(("s", as_items(list(x))))
    def loop(self, n, body_fn):
        bodies = [as_items(body_fn(i)) for i in range(n)]
        for b in bodies[1:]:
            assert len(b) == len(bodies[0]), "loop body length differs"
            for x, y in zip(b, bodies[0]):
                assert x.text == y.text, f"loop body text differs: {x.text} vs {y.text}"
        self.segs.append(("l", bodies))
    def trace(self):
        for s in self.segs:
            if s[0] == "s":
                for it in s[1]: yield it, it
            else:
                for b in s[1]:
                    for st, dy in zip(s[1][0], b): yield st, dy
    def resolve(self):
        self.pass1(); self.pass2()
    def pass1(self):
        vm = {}; lg = {}; nv = 0; nl = 0; dv = 0; dl = 0
        for st, dy in self.trace():
            if dy.text.startswith("s_waitcnt"):
                if "vmcnt(0)" in dy.text: dv = nv
                if "lgkmcnt(0)" in dy.text: dl = nl
            if dy.text == "WAIT":
                if dy.wvm is not None:
                    idx = [vm[t] for t in dy.wvm if t in vm and vm[t] >= dv]
                    miss = [t for t in dy.wvm if t not in vm and not (isinstance(t, tuple) and t[0] == "opt")]
                    assert not miss, f"wait on unknown vm tag {miss}"
                    if idx:
                        n = nv - 1 - max(idx)
                        st.nvm = n if st.nvm is None else min(st.nvm, n)
                if dy.wlg is not None:
                    idx = [lg[t] for t in dy.wlg if t in lg and lg[t] >= dl]
                    miss = [t for t in dy.wlg if t not in lg]
                    assert not miss, f"wait on unknown lg tag {miss}"
                    if idx:
                        n = nl - 1 - max(idx)
                        st.nlg = n if st.nlg is None else min(st.nlg, n)
            if dy.text == "SKIP":
                if dy.key[0] is not None: vm[dy.key[0]] = -1
                if dy.key[1] is not None: lg[dy.key[1]] = -1
            if dy.vm is not None: vm[dy.vm] = nv; nv += 1
            elif is_vmem(dy.text): nv += 1
            if dy.lg is not None: lg[dy.lg] = nl; nl += 1
            elif is_lds(dy.text): nl += 1
    def pass2(self):
        vm = {}; lg = {}; nv = 0; nl = 0; dv = 0; dl = 0
        for st, dy in self.trace():
            if dy.text == "WAIT":
                if st.nvm is not None: dv = max(dv, nv - min(st.nvm, 63))
                if st.nlg is not None: dl = max(dl, nl - min(st.nlg, 15))
            elif dy.text.startswith("s_waitcnt"):
                m = re.search(r"vmcnt\((\d+)\)", dy.text)
                if m: dv = max(dv, nv - int(m.group(1)))
                m = re.search(r"lgkmcnt\((\d+)\)", dy.text)
                if m: dl = max(dl, nl - int(m.group(1)))
            if dy.needs:
                for t in dy.needs:
                    if t in vm: assert vm[t] < dv, f"unmet vm need {t} at {dy.text}"
                    elif t in lg: assert lg[t] < dl, f"unmet lg need {t} at {dy.text}"
                    else: raise AssertionError(f"unknown need {t} at {dy.text}")
            if dy.text == "SKIP":
                if dy.key[0] is not None: vm[dy.key[0]] = -1
                if dy.key[1] is not None: lg[dy.key[1]] = -1
            if dy.vm is not None: vm[dy.vm] = nv; nv += 1
            elif is_vmem(dy.text): nv += 1
            if dy.lg is not None: lg[dy.lg] = nl; nl += 1
            elif is_lds(dy.text): nl += 1
    def final(self, it):
        if it.text == "SKIP": return ""
        if it.text != "WAIT": return it.text
        p = []
        if it.nvm is not None: p.append(f"vmcnt({min(it.nvm,63)})")
        if it.nlg is not None: p.append(f"lgkmcnt({min(it.nlg,15)})")
        if not p: return "s_nop 0"
        return "s_waitcnt " + " ".join(p)
    def text(self, segs=None):
        out = []
        for s in (self.segs if segs is None else segs):
            items = s[1] if s[0] == "s" else s[1][0]
            out += [self.final(i) for i in items]
        return out
    def dyn_text(self, max_iter=3):
        out = []
        for s in self.segs:
            if s[0] == "s": out += [self.final(i) for i in s[1]]
            else:
                for _ in range(min(max_iter, len(s[1]))): out += [self.final(i) for i in s[1][0]]
        return out

def is_vmem(t): return t.startswith(("buffer_load", "buffer_store", "global_load", "global_store", "buffer_atomic", "global_atomic", "buffer_wbl2", "buffer_inv"))
def is_lds(t): return t.startswith("ds_")

_reg = re.compile(r"(?<![\w.])([vas])(\d+)(?![\w])|(?<![\w.])([vas])\[(\d+):(\d+)\]|\b(vcc|exec|m0|scc)\b")
def regs(op):
    s = set()
    for m in _reg.finditer(op):
        if m.group(1): s.add((m.group(1), int(m.group(2))))
        elif m.group(3): s |= {(m.group(3), i) for i in range(int(m.group(4)), int(m.group(5)) + 1)}
        else: s.add((m.group(6), 0))
    return s
def split_ops(t):
    parts = t.split(None, 1)
    if len(parts) == 1: return parts[0], []
    ops = []; d = 0; cur = ""
    for ch in parts[1]:
        if ch == "[": d += 1
        if ch == "]": d -= 1
        if ch == "," and d == 0: ops.append(cur.strip()); cur = ""
        else: cur += ch
    ops.append(cur.strip())
    return parts[0], ops
TRANS = ("v_exp_", "v_log_", "v_rcp_", "v_rsq_", "v_sqrt_", "v_sin_", "v_cos_")
def classify(t):
    mn, ops = split_ops(t)
    d = dict(mn=mn, kind="other", w=set(), r=set())
    if mn.startswith("v_mfma"):
        d["kind"] = "mfma"
        d["D"] = regs(ops[0]); d["A"] = regs(ops[1]); d["B"] = regs(ops[2]); d["C"] = regs(ops[3].split()[0])
        d["w"] = d["D"]; d["r"] = d["A"] | d["B"] | d["C"]
        if "_f32" in mn[len("v_mfma_f32"):]:
            d["cls"] = "sgemm"; d["p"] = 8 if "16x16x4" in mn else 16
        else:
            d["cls"] = "xdl"; d["p"] = 4 if "16x16x32" in mn else 8
    elif mn.startswith("v_"):
        d["kind"] = "valu"
        if mn.startswith("v_cmp"):
            d["w"] = regs(ops[0]); d["r"] = set().union(*[regs(o) for o in ops[1:]])
        elif mn.startswith(("v_add_co", "v_addc_co", "v_sub_co", "v_subb_co", "v_mad_u64", "v_div_scale")):
            d["w"] = regs(ops[0]) | regs(ops[1]); d["r"] = set().union(*[regs(o) for o in ops[2:]])
        elif mn.startswith("v_permlane"):
            d["w"] = regs(ops[0]) | regs(ops[1]); d["r"] = set(d["w"]); d["perm"] = True
        elif mn == "v_nop":
            pass
        else:
            d["w"] = regs(ops[0]); d["r"] = set().union(*[regs(o) for o in ops[1:]]) if len(ops) > 1 else set()
            if mn.startswith(("v_fmac", "v_dot2c", "v_pk_fmac", "v_writelane")): d["r"] |= d["w"]
            if mn.startswith("v_cndmask") and len(ops) == 3: d["r"].add(("vcc", 0))
        if "dpp" in mn or "row_" in t or "quad_perm" in t: d["dpp"] = True; d["dppsrc"] = regs(ops[1])
        if mn.startswith(TRANS): d["trans"] = True
        if mn.startswith(("v_readfirstlane", "v_readlane")): d["rl"] = True
        if mn.startswith("v_dot"): d["dot"] = True
        if "sdwa" in mn and "dst_sel:DWORD" not in t: d["sdwa"] = True
    elif mn.startswith("ds_"):
        d["kind"] = "ds"
        if mn.startswith(("ds_read", "ds_bpermute", "ds_permute", "ds_swizzle")):
            d["w"] = regs(ops[0]); d["r"] = set().union(*[regs(o.split()[0]) for o in ops[1:]])
        else:
            d["r"] = set().union(*[regs(o.split()[0]) for o in ops])
    elif mn.startswith(("buffer_", "global_")):
        d["kind"] = "vmem"
        if mn in ("buffer_wbl2", "buffer_inv"): return d
        lds = t.rstrip().endswith(" lds") or "load_lds" in mn
        allr = [regs(o.split()[0]) for o in ops]
        if lds:
            d["r"] = set().union(*allr) | {("m0", 0)}; d["lds"] = True
        elif "load" in mn:
            d["w"] = allr[0]; d["r"] = set().union(*allr[1:])
        elif "atomic" in mn and " sc0" in t:
            d["w"] = allr[0]; d["r"] = set().union(*allr[(1 if mn.startswith("global") else 0):])
        else:
            d["r"] = set().union(*allr)
            if "x4" in mn or "x3" in mn:
                d["wide"] = allr[0] if mn.startswith("buffer") else allr[1]
    elif mn.startswith("s_"):
        d["kind"] = "salu"
        if mn.startswith(("s_cmp", "s_cbranch", "s_branch", "s_waitcnt", "s_nop", "s_barrier", "s_endpgm", "s_sleep", "s_setprio")):
            d["r"] = set().union(*[regs(o) for o in ops]) if ops else set()
        else:
            d["w"] = regs(ops[0]) if ops else set(); d["r"] = set().union(*[regs(o) for o in ops[1:]]) if len(ops) > 1 else set()
            if "saveexec" in mn: d["w"].add(("exec", 0))
    return d

def check_hazards(lines, name=""):
    ins = []
    for t in lines:
        t = t.split(";")[0].strip()
        if not t or t.endswith(":") or t.startswith("."): continue
        c = classify(t); c["t"] = t
        m = re.match(r"s_nop (\d+)", t)
        c["ws"] = int(m.group(1)) + 1 if m else 1
        ins.append(c)
    errs = []
    for j, c in enumerate(ins):
        dist = 0
        for i in range(j - 1, max(-1, j - 24), -1):
            p = ins[i]
            need = 0
            vw = {r for r in p["w"] if r[0] in "va"}
            sw = {r for r in p["w"] if r[0] in ("s", "vcc")}
            if p["kind"] == "valu":
                if c["kind"] == "mfma" and vw & c["r"]: need = 2
                if c["kind"] == "vmem" and sw & c["r"]: need = max(need, 5)
                if c["kind"] == "valu":
                    if sw & c["r"]: need = max(need, 2)
                    if p.get("trans") and not c.get("trans") and vw & c["r"]: need = max(need, 1)
                    if c.get("dpp") and vw & c["dppsrc"]: need = max(need, 2)
                    if c.get("perm") and vw & c["r"]: need = max(need, 2)
                    if c.get("rl") and vw & c["r"]: need = max(need, 1)
                    if p.get("sdwa") and vw & (c["r"] | c["w"]): need = max(need, 1)
                    if p.get("dot"):
                        if c["mn"] == p["mn"]:
                            ops = split_ops(c["t"])[1]
                            ab = regs(ops[1]) | regs(ops[2])
                            if vw & ab: need = max(need, 3)
                        elif vw & (c["r"] | c["w"]): need = max(need, 3)
                if p.get("dot") and c["kind"] in ("mfma", "ds", "vmem") and vw & (c["r"] | c["w"]): need = max(need, 3)
                if p.get("trans") and c["kind"] in ("ds", "vmem") and vw & c["r"]: need = max(need, 1)
                if ("exec", 0) in p["w"]: need = max(need, 5)
            if p["kind"] == "mfma":
                D = p["D"]; ps = p["p"]
                if c["kind"] == "mfma":
                    if D & (c["A"] | c["B"]): need = {"xdl": {4: 8, 8: 12}, "sgemm": {8: 10, 16: 18}}[p["cls"]][ps]
                    if D & c["C"]:
                        if p["cls"] == "xdl":
                            if c["cls"] == "xdl" and c["C"] == D and c["p"] == ps: pass
                            else: need = max(need, {4: 6, 8: 10}[ps])
                        else:
                            if c["cls"] == "sgemm" and c["C"] != D: need = max(need, {8: 8, 16: 16}[ps])
                    if D & c["D"] and not (D & c["C"]):
                        need = max(need, {4: 6, 8: 10, 16: 16}[ps])
                elif c["kind"] in ("valu", "ds", "vmem"):
                    if D & (c["r"] | c["w"]): need = {"xdl": {4: 8, 8: 12}, "sgemm": {8: 10, 16: 18}}[p["cls"]][ps]
                    if c["kind"] == "valu" and p["cls"] == "xdl" and p["C"] & c["w"]: need = max(need, {4: 3, 8: 7}[ps])
            if p["kind"] == "salu" and ("m0", 0) in p["w"] and c.get("lds"): need = max(need, 1)
            if p.get("wide") and c["kind"] in ("valu",) and p["wide"] & c["w"]: need = max(need, 2)
            if p.get("wide") and c["kind"] in ("ds", "vmem", "mfma") and p["wide"] & c["w"]: need = max(need, 1)
            if need > dist:
                errs.append(f"{name}: hazard need {need} have {dist}: [{p['t']}] -> [{c['t']}]")
            dist += p["ws"]
    return errs

def interleave(mf, fill):
    by = {}
    for pos, it in fill: by.setdefault(pos, []).extend(as_items(it))
    out = list(by.get(-1, []))
    for i, m in enumerate(mf):
        out += as_items(m); out += by.get(i, [])
    for k in by: assert -1 <= k < len(mf), k
    return out

def vr(b, n=1, t="v"): return f"{t}{b}" if n == 1 else f"{t}[{b}:{b+n-1}]"

KD = """.section .rodata,"a"
.p2align 6
.amdhsa_kernel {name}
  .amdhsa_next_free_vgpr {vgpr}
  .amdhsa_next_free_sgpr 102
  .amdhsa_accum_offset {acc}
  .amdhsa_group_segment_fixed_size 0
  .amdhsa_kernarg_size 96
  .amdhsa_user_sgpr_count 2
  .amdhsa_user_sgpr_kernarg_segment_ptr 1
  .amdhsa_system_sgpr_workgroup_id_x 1
  .amdhsa_float_denorm_mode_32 3
.end_amdhsa_kernel
.text
"""

class Sched:
    def __init__(self, mf):
        self.mf = as_items(mf); self.n = len(mf); self.chains = []
        self.slots = {p: [] for p in range(-1, self.n)}
        self.cost = {p: 0 for p in range(-1, self.n)}
    def fix(self, p, *x, cost=None):
        it = as_items(list(x))
        self.slots[p] += it; self.cost[p] += len(it) if cost is None else cost
        return p
    def put(self, lo, x, hi=None, cap=1):
        hi = self.n - 1 if hi is None else min(hi, self.n - 1)
        lo = min(lo, hi)
        it = as_items(x)
        best = None
        for p in range(lo, hi + 1):
            if self.cost[p] + (len(it) > 1 and cap > 1) < cap or (len(it) > 1 and p >= lo + 3 and self.cost[p] < cap):
                best = p; break
        if best is None:
            best = min(range(lo, hi + 1), key=lambda p: (self.cost[p], p))
        self.slots[best] += it; self.cost[best] += len(it)
        return best
    def chain(self, lo, xs, hi=None, sep=1, cap=1, step=None):
        p = lo - sep
        out = []
        xs = atomize([as_items(x) for x in xs])
        self.chains.append([y for x in xs for y in x])
        for i, x in enumerate(xs):
            want = max(p + sep, lo + (int(i * step) if step else 0))
            q = self.put(want, x, hi, cap)
            assert q >= p, "chain order violated"
            p = q; out.append(q)
        return out
    def out(self):
        o = list(self.slots[-1])
        for i, m in enumerate(self.mf):
            o += as_items(m); o += self.slots[i]
        for c in self.chains: verify_flow(c, o, "chain")
        return o


_SCCW = ("s_add", "s_sub", "s_and", "s_or", "s_xor", "s_lshl", "s_lshr", "s_ashr", "s_min", "s_max", "s_bfe", "s_cmp", "s_bitcmp", "s_not", "s_andn2")
_SCCR = ("s_cselect", "s_cbranch_scc", "s_addc", "s_subb")
def rw(text):
    t = text.strip()
    if t in ("WAIT", "SKIP") or t.endswith(":") or t.startswith("."): return set(), set()
    c = classify(t)
    r, w = set(c["r"]), set(c["w"])
    if t.startswith(_SCCW): w.add(("scc", 0))
    if t.startswith(_SCCR): r.add(("scc", 0))
    if t.startswith("s_cbranch_vcc"): r.add(("vcc", 0))
    return r, w
def verify_flow(seq, final, what=""):
    pos = {id(x): i for i, x in enumerate(final)}
    mine = {id(x) for x in seq}
    last = {}
    prev = -1
    for x in seq:
        i = pos[id(x)]
        assert i > prev, f"{what}: order broken at {x.text}"
        prev = i
        r, w = rw(x.text)
        for reg in r:
            if reg in last:
                for y in final[last[reg] + 1:i]:
                    if id(y) not in mine and reg in rw(y.text)[1]:
                        raise AssertionError(f"{what}: {reg} written by [{y.text}] between [{final[last[reg]].text}] and [{x.text}]")
        for reg in w: last[reg] = i

def atomize(groups):
    out = []; wi = None
    for g in groups:
        reads_first = False; seen_w = False
        for x in g:
            r, w = rw(x.text)
            if ("scc", 0) in r and not seen_w: reads_first = True
            if ("scc", 0) in w: seen_w = True
        if reads_first and wi is not None:
            merged = [y for h in out[wi:] for y in h] + list(g)
            out[wi:] = [merged]
        else:
            out.append(list(g))
            if seen_w: wi = len(out) - 1
    return out
```

```python
from asmlib import *
import sys

KNAME = "recurrent_scan__spectral_fnet__glu_gated_reglu__prompt_kernel"

WS_H = 0
WS_U = 0x1200000
WS_CS = 0x1440000
WS_ST = 0x1478000
WS_T64 = 0x1490000
WS_FT = 0x1494000
WS_FH = 0x1498000
WS_FP = 0x14A0000
WS_FX = 0x14C0000
WS_PART = 0x1500000
WS_PX = 0x1E00000
WS_TS = 0x4000000
WS_SIZE = 268435456
OOB = 0x40000000

SH0, SHX = 0x18000, 0x38000
FRE, FIM = 0x1E000, 0x26000
STAT = 0x25000
MS = [0x10000, 0x0, 0x8000, 0x10000, 0x1C000, 0x0, 0x8000, 0x10000, 0x1C000]
FREE = {3: 3, 4: 3, 5: 7, 6: 11, 7: 15, 8: 19}
T64 = 0x24000
XA = [0x20000 + 4096 * i for i in range(5)] + [0x18000 + 4096 * i for i in range(4)]
HM = 0x1C000

sX, sWG, sWU, sWS, sDR, sDI, sWD, sOUT, sSJ = 8, 12, 16, 20, 24, 28, 4, 52, 56
sDBG = 80
sW, sRB, sJ, sKQ, sJQ = 32, 33, 34, 35, 36
sKW, sDW, sDX, sM0W, sDelta, sCnt, sM0S, sM0M = 37, 38, 39, 40, 41, 42, 43, 3
sT0, sT1, sT2, sT3 = 44, 45, 46, 47
sHV, sW8K, sW8K1, sC8K = 48, 49, 50, 51
sCSo, sSTo = 60, 61
sNonce = 62
sFexp = 63
sFb = 64
sMk0, sMk1 = 86, 88
sSpin = 74
sR3 = 65
sSo = 75
sPtr = 76
pX, pSR, pSI, pHR, pHI, pWG, pWU, pWD, pOUT, pDBG, pWS = [sPtr + 2 * i for i in (0, 1, 2, 3, 4, 6, 7, 8, 9, 10, 11)]

vXo, vWo, vMg, vMu, vAr, vAm, vBr, vLane = 0, 4, 8, 9, 10, 14, 15, 19
vMa = 20
vC0, vC1, vSt = 20, 21, 22
vZero, vSig, vR2b = 20, 21, 22
vFlag = 23
vWd = 24
vFd = 30
vTch = 31
vR2 = 33
vS = 34
vCS = 38
vT = 48
vAcc = 56
aB, aA, aM, aAcc, aZ = 0, 64, 100, 124, 212
aSel, aOne = 244, 248
aSide = 212
aT64 = 228
sHook, sHk2 = 41, 40
sSTj = 64
vPub = 38

_aset = [(5, b) for b in range(8)] + [(7, b) for b in range(8)] + [(3, b) for b in range(2, 8)]
_vset = [(t, b) for t in range(9) for b in range(8) if (t, b) not in _aset]
assert len(_vset) == 50 and len(_aset) == 22
def acc_loc(t, b):
    if t == "z": return ("a", aZ + 4 * b)
    if (t, b) in _aset: return ("a", aAcc + 4 * _aset.index((t, b)))
    return ("v", vAcc + 4 * _vset.index((t, b)))
def acc(t, b):
    k, r = acc_loc(t, b); return vr(r, 4, k)
def breg(st, b): return vr(aB + (st * 8 + b) * 4, 4, "a")
def areg(t): return vr(aA + 4 * t, 4, "a")

class Cfg:
    ts = False
    fine = False
    hfast, hn = 8, 14
    wfast, wpace = 6.0, 8.0
    qu = 28
    g2x = ''
    hpace = 17.0
    hmid = 2
    efirst = 1
    erows = 3
    mtouch = True
    cshare = 13
    flead = {1: 3, 2: 6, 3: 6}
    qsig = 2
C = Cfg()

_nst = [0]
vTSV = 55
def stamp(i):
    if not C.ts: return []
    return ["s_memtime s[0:1]", "s_waitcnt lgkmcnt(0)", f"v_writelane_b32 v{vTSV}, s0, {i}"]

def dma(voff, srd, soff, off, tag):
    o = f" offset:{off}" if off else ""
    return I(f"buffer_load_dwordx4 v{voff}, s[{srd}:{srd+3}], {soff} offen{o} lds", vm=tag)
def srd(d, p, size):
    return f"s_mov_b32 s{d}, s{p}\ns_mov_b32 s{d+1}, s{p+1}\ns_mov_b32 s{d+2}, {size}\ns_mov_b32 s{d+3}, 0x20000"

def pure_dmas(k):
    g = [dma(vWo + i, sWG, f"s{sKW}", 1024 * i, ("pw", k, 0, i)) for i in range(4)]
    u = [dma(vWo + i, sWU, f"s{sKW}", 1024 * i, ("pw", k, 1, i)) for i in range(4)]
    return g, u
def shared_dmas(D):
    x = [dma(vXo + i, sX, f"s{sDX}", 1024 * i, ("sx", D, i)) for i in range(4)]
    return x, dma(vMg, sWG, f"s{sDW}", 0, ("sm", D, 0)), dma(vMg, sWU, f"s{sDW}", 0, ("sm", D, 1))
def pw_tags(k, m=None): return [("pw", k, mm, i) for mm in (range(2) if m is None else [m]) for i in range(4)]
def sh_tags(D): return [("sx", D, i) for i in range(4)] + [("sm", D, 0), ("sm", D, 1)]

def a_reads(t, k):
    if t < 8:
        addr, off = vAr + (t >> 1), (t & 1) * 4096 + (k & 1) * 32768
        return [I(f"ds_read_b64_tr_b16 a[{aA+4*t+2*h}:{aA+4*t+2*h+1}], v{addr} offset:{off+512*h}", lg=("A", k, t, h), needs=pw_tags(k, t & 1)) for h in range(2)]
    off = 16384 + (k & 1) * 2048
    return [I(f"ds_read_b64_tr_b16 a[{aA+32+2*h}:{aA+32+2*h+1}], v{vAm} offset:{off+256*h}", lg=("A", k, 8, h), needs=sh_tags(k >> 1)) for h in range(2)]
def b_read(b, k):
    return I(f"ds_read_b128 {breg(k & 1, b)}, v{vBr + (b >> 1)} offset:{(b & 1) * 2048}", lg=("B", k, b), needs=sh_tags(k >> 1))
def m_load(k):
    return I(f"global_load_dwordx4 a[{aM+(k&1)*4}:{aM+(k&1)*4+3}], v[{vMa}:{vMa+1}], off offset:{(k&1)*64}", vm=("M", k))
def side_loads(k):
    b = aM + (k & 1) * 12
    return [I(f"buffer_load_dwordx4 a[{b}:{b+3}], v{vC0}, s[{sSJ}:{sSJ+3}], s{sCSo} offen", vm=("SJ", k, 0)),
            I(f"buffer_load_dwordx4 a[{b+4}:{b+7}], v{vC1}, s[{sSJ}:{sSJ+3}], s{sCSo} offen", vm=("SJ", k, 1)),
            I(f"buffer_load_dwordx4 a[{b+8}:{b+11}], v{vSt}, s[{sX}:{sX+3}], s{sSTo} offen", vm=("SJ", k, 2))]
def code_touch(lo, d):
    return [[f"s_getpc_b64 s[{sT2}:{sT3}]", f"L_pc{d}:"]] + as_items(f"""
    s_lshr_b32 s{sT0}, s2, 3
    s_mul_i32 s{sT0}, s{sT0}, {C.cshare*128}
    v_min_u32 v{lo}, {C.cshare-1}, v{vLane}
    v_lshl_add_u32 v{lo}, v{lo}, 7, s{sT0}
    v_min_u32 v{lo}, L_end-{KNAME}, v{lo}
    s_sub_u32 s{sT2}, s{sT2}, L_pc{d}-{KNAME}
    s_subb_u32 s{sT3}, s{sT3}, 0
    v_mov_b32 v{lo+1}, s{sT3}
    v_add_co_u32 v{lo}, vcc, s{sT2}, v{lo}
    s_nop 1
    v_addc_co_u32 v{lo+1}, vcc, 0, v{lo+1}, vcc
    global_load_dword v{lo}, v[{lo}:{lo+1}], off
    """)
def side_adv(k):
    return [f"s_add_u32 s{sCSo}, s{sCSo}, {48*9216}", f"s_add_u32 s{sSTo}, s{sSTo}, {320 if k & 1 else 64}",
            [f"s_cmp_ge_u32 s{sSTo}, 1152", f"s_cselect_b32 s{sSTo}, {OOB}, s{sSTo}"]]

def prologue(heavy):
    P = []; a = P.append
    L = vLane
    a(f"s_load_dwordx16 s[{sPtr}:{sPtr+15}], s[0:1], 0")
    a(f"s_load_dwordx8 s[{sPtr+16}:{sPtr+23}], s[0:1], 64")
    if heavy: a(f"s_memrealtime s[{sNonce}:{sNonce+1}]")
    a(f"""
    v_lshrrev_b32 v1, 6, v0
    v_and_b32 v{L}, 63, v0
    v_readfirstlane_b32 s{sW}, v1
    s_and_b32 s{sKQ}, s2, 3
    s_bfe_u32 s{sT0}, s2, 0x10002
    s_bfe_u32 s{sJQ}, s2, 0x20003
    s_lshr_b32 s{sT1}, s2, 5
    s_lshl_b32 s{sT0}, s{sT0}, 3
    s_add_u32 s{sRB}, s{sT0}, s{sT1}
    s_lshl_b32 s{sJ}, s{sKQ}, 2
    s_add_u32 s{sJ}, s{sJ}, s{sJQ}
    s_lshl_b32 s{sW8K}, s{sW}, 13
    """)
    t1, t2, t3, t4 = vT, vT + 1, vT + 2, vT + 3
    a(f"""
    s_lshl_b32 s{sT0}, s{sRB}, 2
    s_add_u32 s{sT0}, s{sT0}, s{sW}
    s_mul_i32 s{sT0}, s{sT0}, 1152
    v_lshrrev_b32 v{t1}, 3, v{L}
    v_mul_u32_u24 v{t4}, 73728, v{t1}
    v_add_u32 v{t4}, s{sT0}, v{t4}
    v_and_b32 v{t2}, 7, v{L}
    v_lshrrev_b32 v{t3}, 4, v{L}
    v_xor_b32 v{t3}, v{t2}, v{t3}
    v_lshl_add_u32 v{vXo}, v{t3}, 4, v{t4}
    v_xor_b32 v{t3}, 4, v{t3}
    v_lshl_add_u32 v{vXo+1}, v{t3}, 4, v{t4}
    v_add_u32 v{vXo+2}, {2*(589824-1024)}, v{vXo}
    v_add_u32 v{vXo+3}, {3*(589824-1024)}, v{vXo+1}
    v_add_u32 v{vXo+1}, {589824-1024}, v{vXo+1}
    """)
    a(f"""
    s_mul_i32 s{sT0}, s{sJ}, 576
    s_and_b32 s{sT1}, s{sJ}, 1
    s_lshl_b32 s{sT2}, s{sT1}, 6
    s_add_u32 s{sT2}, s{sT2}, s{sT0}
    s_lshl_b32 s{sT3}, s{sW}, 7
    s_add_u32 s{sT2}, s{sT2}, s{sT3}
    s_xor_b32 s{sT1}, s{sT1}, 1
    s_lshl_b32 s{sT1}, s{sT1}, 9
    s_add_u32 s{sT1}, s{sT1}, s{sT0}
    v_mul_u32_u24 v{t4}, 9216, v{t1}
    v_add_u32 v{t4}, s{sT2}, v{t4}
    v_bfe_u32 v{t3}, v{L}, 4, 1
    v_lshlrev_b32 v{t3}, 1, v{t3}
    v_xor_b32 v{t3}, v{t2}, v{t3}
    v_lshl_add_u32 v{vWo}, v{t3}, 4, v{t4}
    v_xor_b32 v{t3}, 4, v{t3}
    v_lshl_add_u32 v{vWo+1}, v{t3}, 4, v{t4}
    v_add_u32 v{vWo+2}, {2*(8*9216-1024)}, v{vWo}
    v_add_u32 v{vWo+3}, {3*(8*9216-1024)}, v{vWo+1}
    v_add_u32 v{vWo+1}, {8*9216-1024}, v{vWo+1}
    s_mul_i32 s{sT0}, s{sW}, {16*9216}
    s_add_u32 s{sT1}, s{sT1}, s{sT0}
    v_lshrrev_b32 v{t1}, 2, v{L}
    v_mul_u32_u24 v{t4}, 9216, v{t1}
    v_add_u32 v{t4}, s{sT1}, v{t4}
    v_and_b32 v{t2}, 3, v{L}
    v_lshrrev_b32 v{t3}, 5, v{L}
    v_xor_b32 v{t2}, v{t2}, v{t3}
    v_lshl_add_u32 v{vMg}, v{t2}, 4, v{t4}
    v_mul_u32_u24 v{t1}, 57, v{L}
    v_lshrrev_b32 v{t1}, 9, v{t1}
    v_mul_u32_u24 v{t2}, 9, v{t1}
    v_sub_u32 v{t2}, v{L}, v{t2}
    v_mul_u32_u24 v{t3}, {64*9216}, v{t1}
    v_lshl_add_u32 v{t3}, v{t2}, 7, v{t3}
    s_bfe_u32 s{sT0}, s2, 0x10002
    s_lshl_b32 s{sT0}, s{sT0}, 5
    s_lshr_b32 s{sT1}, s2, 3
    s_add_u32 s{sT0}, s{sT0}, s{sT1}
    s_mul_i32 s{sT0}, s{sT0}, 9216
    s_mul_i32 s{sT1}, s{sKQ}, 2304
    s_add_u32 s{sT0}, s{sT0}, s{sT1}
    s_and_b32 s{sT1}, s{sW}, 1
    s_mul_i32 s{sT1}, s{sT1}, 1152
    s_add_u32 s{sT0}, s{sT0}, s{sT1}
    v_add_u32 v{t3}, s{sT0}, v{t3}
    v_cmp_gt_u32 vcc, {C.efirst}, v{t1}
    v_mov_b32 v{t4}, {OOB}
    s_lshl_b32 s{sM0S}, s{sW}, 12
    v_cndmask_b32 v42, v{t4}, v{t3}, vcc
    v_cmp_gt_u32 vcc, {max(C.erows - C.efirst, 0)}, v{t1}
    v_add_u32 v{t3}, {C.efirst*64*9216}, v{t3}
    s_nop 0
    v_cndmask_b32 v43, v{t4}, v{t3}, vcc
    s_add_u32 s{sM0S}, s{sM0S}, {SH0}
    s_lshl_b32 s{sM0M}, s{sW}, 10
    s_add_u32 s{sM0M}, s{sM0M}, {SH0+16384}
    s_waitcnt lgkmcnt(0)
    """)
    a(srd(sX, pX, 2359296)); a(srd(sWG, pWG, 5308416)); a(srd(sWU, pWU, 5308416))
    if heavy:
        a(uncounted(as_items(f"""
        s_or_b32 s{sT0}, s2, s{sW}
        s_cbranch_scc1 L_nononce
        s_or_b32 s{sNonce}, s{sNonce}, 1
        v_mov_b32 v{t1}, 0
        v_mov_b32 v{t2}, s{sNonce}
        global_store_dword v{t1}, v{t2}, s[{pDBG}:{pDBG+1}] offset:8 sc1
        L_nononce:
        """)))
    if C.erows:
        a(f"""
        s_cmp_lt_u32 s{sW}, 2
        s_cselect_b32 s{sOUT}, s{pWG}, s{pWU}
        s_cselect_b32 s{sOUT+1}, s{pWG+1}, s{pWU+1}
        s_mov_b32 s{sOUT+2}, 5308416
        s_mov_b32 s{sOUT+3}, 0x20000
        """)
        if C.efirst: a(f"buffer_load_dword v42, v42, s[{sOUT}:{sOUT+3}], 0 offen")
    x0, mg0, mu0 = shared_dmas(0)
    g0, u0 = pure_dmas(0)
    a([f"s_mov_b32 s{sDX}, 0", f"s_mov_b32 m0, s{sM0S}", f"s_mov_b32 s{sDW}, 0"] + x0)
    a([f"s_mov_b32 m0, s{sW8K}", f"s_mov_b32 s{sKW}, 0"] + g0)
    second = ["s_add_u32 m0, m0, 4096", "s_nop 0"] + u0 + [f"s_mov_b32 m0, s{sM0M}", "s_nop 0", mg0, "s_add_u32 m0, m0, 4096", "s_nop 0", mu0]
    a(stamp(0))
    a(code_touch(40, f"a{int(heavy)}"))
    ET = []
    if C.erows:
        ET.append(f"buffer_load_dword v43, v43, s[{sOUT}:{sOUT+3}], 0 offen")
        ET.append(f"""
        s_lshl_b32 s{sT0}, s{sJ}, 3
        s_lshl_b32 s{sT1}, s{sW}, 1
        s_add_u32 s{sT0}, s{sT0}, s{sT1}
        s_lshr_b32 s{sT1}, s{sT0}, 5
        s_and_b32 s{sT0}, s{sT0}, 31
        s_lshl_b32 s{sT0}, s{sT0}, 6
        s_add_u32 s{sT0}, s{sT0}, s{sT1}
        s_lshl_b32 s{sT1}, s{sRB}, 2
        s_add_u32 s{sT0}, s{sT0}, s{sT1}
        s_mul_i32 s{sT0}, s{sT0}, 1152
        s_add_u32 s{sT0}, s{sT0}, 128
        v_and_b32 v{t1}, 1, v{L}
        v_mul_u32_u24 v{t1}, 73728, v{t1}
        v_lshrrev_b32 v{t2}, 1, v{L}
        v_lshl_add_u32 v{t1}, v{t2}, 7, v{t1}
        v_cmp_gt_u32 vcc, 6, v{L}
        v_add_u32 v{t1}, s{sT0}, v{t1}
        v_mov_b32 v{t2}, {OOB}
        v_cndmask_b32 v44, v{t2}, v{t1}, vcc
        buffer_load_dword v44, v44, s[{sX}:{sX+3}], 0 offen
        """)
    R = []; r = R.append
    r(srd(sWS, pWS, WS_SIZE)); r(srd(sWD, pWD, 5308416)); r(srd(sDR, pSR, 8388608)); r(srd(sDI, pSI, 8388608))
    t5, t6, t7 = vT + 4, vT + 5, vT + 6
    r(f"""
    v_lshrrev_b32 v{t1}, 4, v{L}
    v_bfe_u32 v{t2}, v{L}, 2, 2
    v_and_b32 v{t3}, 3, v{L}
    v_lshl_add_u32 v{t4}, v{t1}, 3, v{t2}
    v_lshlrev_b32 v{t5}, 7, v{t4}
    v_lshl_add_u32 v{t5}, v{t3}, 3, v{t5}
    v_add_u32 v{t5}, s{sW8K}, v{t5}
    v_lshrrev_b32 v{t6}, 1, v{t2}
    v_and_b32 v{t7}, 1, v{t1}
    v_lshl_or_b32 v{t6}, v{t7}, 1, v{t6}
    v_lshl_add_u32 v{vAr}, v{t6}, 5, v{t5}
    v_xor_b32 v{vAr+1}, 32, v{vAr}
    v_xor_b32 v{vAr+2}, 64, v{vAr}
    v_xor_b32 v{vAr+3}, 96, v{vAr}
    v_lshlrev_b32 v{t5}, 6, v{t4}
    v_lshrrev_b32 v{t6}, 1, v{t3}
    v_lshl_add_u32 v{t5}, v{t6}, 12, v{t5}
    s_lshr_b32 s{sT0}, s{sW}, 1
    v_xor_b32 v{t7}, s{sT0}, v{t7}
    v_lshl_add_u32 v{t5}, v{t7}, 4, v{t5}
    v_and_b32 v{t6}, 1, v{t3}
    v_lshl_add_u32 v{t5}, v{t6}, 5, v{t5}
    s_and_b32 s{sT0}, s{sW}, 1
    s_lshl_b32 s{sT0}, s{sT0}, 3
    s_add_u32 s{sT0}, s{sT0}, {SH0}
    v_add_u32 v{vAm}, s{sT0}, v{t5}
    v_and_b32 v{t2}, 15, v{L}
    v_lshrrev_b32 v{t3}, 1, v{t2}
    v_xor_b32 v{t3}, v{t3}, v{t1}
    v_lshlrev_b32 v{t3}, 4, v{t3}
    v_lshl_add_u32 v{t3}, v{t2}, 7, v{t3}
    v_add_u32 v{vBr}, s{sM0S}, v{t3}
    v_xor_b32 v{vBr+1}, 0x1000, v{vBr}
    v_xor_b32 v{vBr+2}, 0x2000, v{vBr}
    v_xor_b32 v{vBr+3}, 0x3000, v{vBr}
    """)
    nR1 = len(as_items(R))
    r(f"""
    s_lshl_b32 s{sT0}, s{sJQ}, 8
    s_lshl_b32 s{sT1}, s{sKQ}, 1
    v_lshrrev_b32 v{t1}, 4, v{L}
    v_bfe_u32 v{t2}, v{L}, 1, 3
    v_xor_b32 v{t2}, v{t2}, v{t1}
    v_xor_b32 v{t2}, s{sT1}, v{t2}
    v_mul_u32_u24 v{t1}, 1152, v{t1}
    v_and_b32 v{t3}, 1, v{L}
    v_lshl_add_u32 v{t1}, v{t3}, 4, v{t1}
    v_add_u32 v{t1}, s{sT0}, v{t1}
    v_lshl_add_u32 v{vWd}, v{t2}, 5, v{t1}
    v_xor_b32 v{t2}, 4, v{t2}
    v_lshl_add_u32 v{vWd+1}, v{t2}, 5, v{t1}
    v_add_u32 v{vWd+2}, {2*(4608-1024)}, v{vWd}
    v_add_u32 v{vWd+3}, {3*(4608-1024)}, v{vWd+1}
    v_add_u32 v{vWd+1}, {4608-1024}, v{vWd+1}
    v_lshrrev_b32 v{t1}, 3, v{L}
    v_bfe_u32 v{t2}, v{L}, 1, 2
    v_bfe_u32 v{t4}, v{L}, 4, 2
    v_xor_b32 v{t2}, v{t2}, v{t4}
    v_mul_u32_u24 v{t1}, 1152, v{t1}
    v_lshl_add_u32 v{t1}, v{t3}, 4, v{t1}
    v_lshl_add_u32 v{t1}, v{t2}, 5, v{t1}
    v_add_u32 v{vWd+4}, 1024, v{t1}
    s_mov_b32 s{sSo}, 0x01020300
    s_cmp_ge_u32 s{sJQ}, 1
    s_cselect_b32 s{sSo}, 0x00020301, s{sSo}
    s_cmp_ge_u32 s{sJQ}, 2
    s_cselect_b32 s{sSo}, 0x00010302, s{sSo}
    s_cmp_ge_u32 s{sJQ}, 3
    s_cselect_b32 s{sSo}, 0x00010203, s{sSo}
    s_cselect_b32 s{sT0}, 0, s{sJQ}
    s_mul_i32 s{sR3}, s{sT0}, 3
    v_lshl_add_u32 v{t1}, v{L}, 2, s{sW}
    v_mul_u32_u24 v{t2}, 57, v{t1}
    v_lshrrev_b32 v{t2}, 9, v{t2}
    v_mul_u32_u24 v{t3}, 9, v{t2}
    v_sub_u32 v{t1}, v{t1}, v{t3}
    v_cmp_eq_u32 vcc, 0, v{t2}
    v_mov_b32 v{t3}, s{sR3}
    s_nop 0
    v_cndmask_b32_e64 v{t3}, v{t3}, 0, vcc
    v_add_u32 v{t1}, v{t1}, v{t3}
    v_cmp_lt_u32 vcc, 8, v{t1}
    v_subrev_u32 v{t3}, 9, v{t1}
    v_lshlrev_b32 v{t2}, 3, v{t2}
    v_cndmask_b32 v{t1}, v{t1}, v{t3}, vcc
    v_bfe_u32 v{t2}, s{sSo}, v{t2}, 8
    s_mul_i32 s{sT1}, s{sKQ}, 36
    v_mad_u32_u24 v{t1}, v{t2}, 9, v{t1}
    v_add_u32 v{t1}, s{sT1}, v{t1}
    v_mul_u32_u24 v{t1}, 36864, v{t1}
    s_mul_i32 s{sXo}, s{sJ}, {288*1152}
    """)
    for i in range(9): r(f"v_readlane_b32 s{sWs[i]}, v{t1}, {i}")
    r(f"""
    s_bfe_u32 s{sT0}, s2, 0x10002
    s_mul_i32 s{sT0}, s{sT0}, 576
    s_mul_i32 s{sT1}, s{sKQ}, 1152
    s_add_u32 s{sT0}, s{sT0}, s{sT1}
    s_lshr_b32 s{sT1}, s2, 3
    s_mul_i32 s{sT1}, s{sT1}, 18
    s_add_u32 s{sT0}, s{sT0}, s{sT1}
    s_mul_i32 s{sT0}, s{sT0}, 1152
    s_mul_i32 s{sT1}, s{sW}, {41*128}
    s_add_u32 s{sT0}, s{sT0}, s{sT1}
    v_lshl_add_u32 v{vTch}, v{L}, 7, s{sT0}
    v_cmp_gt_u32 vcc, 41, v{L}
    v_mov_b32 v{t2}, {OOB}
    s_lshl_b32 s{sT0}, s2, 3
    s_lshr_b32 s{sT1}, s{sW}, 1
    v_cndmask_b32 v{vTch}, v{t2}, v{vTch}, vcc
    s_lshl_b32 s{sT1}, s{sT1}, 2
    s_add_u32 s{sT0}, s{sT0}, s{sT1}
    v_add_u32 v{t1}, s{sT0}, v{L}
    v_cmp_gt_u32 vcc, 4, v{L}
    v_lshlrev_b32 v{t1}, 12, v{t1}
    s_nop 0
    v_cndmask_b32 v{vTch+1}, v{t2}, v{t1}, vcc
    """)
    r(f"""
    s_mul_i32 s{sT0}, s{sJ}, 2304
    s_and_b32 s{sT1}, s{sJ}, 1
    s_lshl_b32 s{sT2}, s{sT1}, 8
    s_add_u32 s{sT2}, s{sT2}, s{sT0}
    s_lshl_b32 s{sT3}, s{sW}, 9
    s_add_u32 s{sT2}, s{sT2}, s{sT3}
    s_xor_b32 s{sT1}, s{sT1}, 1
    s_lshl_b32 s{sT1}, s{sT1}, 11
    s_add_u32 s{sT1}, s{sT1}, s{sT0}
    s_lshl_b32 s{sT3}, s{sW}, 5
    s_add_u32 s{sT1}, s{sT1}, s{sT3}
    v_lshrrev_b32 v{t1}, 4, v{L}
    v_mul_u32_u24 v{t2}, 73728, v{t1}
    v_cmp_eq_u32 vcc, 3, v{t1}
    v_mov_b32 v{t3}, {OOB}
    v_and_b32 v{t4}, 15, v{L}
    v_cndmask_b32 v{t2}, v{t2}, v{t3}, vcc
    v_lshl_add_u32 v{t5}, v{t4}, 3, v{t2}
    v_add_u32 v{vS}, s{sT2}, v{t5}
    v_and_b32 v{t5}, 3, v{L}
    v_lshlrev_b32 v{vS+3}, 7, v{t5}
    v_lshl_add_u32 v{t2}, v{t5}, 3, v{t2}
    v_bfe_u32 v{t5}, v{L}, 2, 1
    v_lshl_add_u32 v{t2}, v{t5}, 7, v{t2}
    v_bfe_u32 v{t5}, v{L}, 3, 1
    v_mul_u32_u24 v{t5}, 36864, v{t5}
    v_add3_u32 v{vS+1}, v{t2}, v{t5}, s{sT1}
    v_lshlrev_b32 v{t1}, 15, v{t1}
    s_lshl_b32 s{sT0}, s{sRB}, 2
    s_add_u32 s{sT0}, s{sT0}, s{sW}
    v_cndmask_b32 v{t1}, v{t1}, v{t3}, vcc
    s_lshl_b32 s{sT0}, s{sT0}, 9
    v_lshl_add_u32 v{t1}, v{t4}, 4, v{t1}
    v_add_u32 v{vS+2}, s{sT0}, v{t1}
    """)
    R = as_items(R)
    V = []; V2 = []; v = V.append
    if heavy:
        v(f"""
        s_lshl_b32 s{sT0}, s{sHV}, 2
        s_add_u32 s{sT0}, s{sT0}, s{sW}
        s_lshl_b32 s{sT0}, s{sT0}, 3
        s_add_u32 s{sT0}, s{sT0}, 1
        s_mul_i32 s{sT0}, s{sT0}, 1152
        v_and_b32 v{t1}, 7, v{L}
        v_mul_u32_u24 v{t1}, 1152, v{t1}
        v_lshrrev_b32 v{t2}, 4, v{L}
        v_lshl_add_u32 v{t1}, v{t2}, 4, v{t1}
        v_add_u32 v{t1}, s{sT0}, v{t1}
        v_and_b32 v{t2}, 8, v{L}
        v_cmp_eq_u32 vcc, 0, v{t2}
        v_mov_b32 v{t2}, s{pHR}
        v_mov_b32 v{t3}, s{pHI}
        v_mov_b32 v{t4}, s{pHR+1}
        v_mov_b32 v{t5}, s{pHI+1}
        v_cndmask_b32 v{t2}, v{t3}, v{t2}, vcc
        v_cndmask_b32 v{t4}, v{t5}, v{t4}, vcc
        v_add_co_u32 v{vMa}, vcc, v{t2}, v{t1}
        s_nop 1
        v_addc_co_u32 v{vMa+1}, vcc, 0, v{t4}, vcc
        """)
        v([m_load(0), m_load(1)])
        v = V2.append
        if C.erows:
            v(f"""
            s_and_b32 s{sT1}, s{sRB}, 7
            s_mul_i32 s{sT1}, s{sT1}, 1152
            s_add_u32 s{sT0}, s{sT0}, s{sT1}
            v_min_u32 v46, 8, v{L}
            v_lshl_add_u32 v46, v46, 7, s{sT0}
            s_cmp_lt_u32 s{sRB}, 8
            s_cselect_b64 s[{sT2}:{sT3}], s[{pHR}:{pHR+1}], s[{pHI}:{pHI+1}]
            global_load_dword v46, v46, s[{sT2}:{sT3}]
            """.replace("s_and_b32", f"s_lshl_b32 s{sT0}, s{sHV}, 2\ns_add_u32 s{sT0}, s{sT0}, s{sW}\ns_lshl_b32 s{sT0}, s{sT0}, 3\ns_add_u32 s{sT0}, s{sT0}, 1\ns_mul_i32 s{sT0}, s{sT0}, 1152\ns_and_b32", 1))
        v(srd(sSJ, pDBG, 256))
        v(f"s_bfe_u32 s{sHook}, s2, 0x20005\ns_min_u32 s{sHook}, s{sHook}, {C.hmid}")
        v(f"""
        v_add_co_u32 v{vMa}, vcc, 128, v{vMa}
        s_lshl_b32 s{sT0}, s{sRB}, 2
        s_add_u32 s{sT0}, s{sT0}, s{sW}
        v_addc_co_u32 v{vMa+1}, vcc, 0, v{vMa+1}, vcc
        s_lshl_b32 s{sT0}, s{sT0}, 12
        v_lshrrev_b32 v{t1}, 2, v{L}
        v_lshlrev_b32 v{t1}, 18, v{t1}
        v_add_u32 v{t1}, s{sT0}, v{t1}
        v_and_b32 v{t2}, 3, v{L}
        v_bfe_u32 v{t3}, v{L}, 4, 1
        v_lshlrev_b32 v{t3}, 1, v{t3}
        v_xor_b32 v{t2}, v{t2}, v{t3}
        v_lshl_add_u32 v{vFd}, v{t2}, 4, v{t1}
        """)
    else:
        v(f"""
        s_lshl_b32 s{sT0}, s{sRB}, 2
        s_add_u32 s{sT0}, s{sT0}, s{sKQ}
        s_mul_i32 s{sT1}, s{sRB}, 3
        s_add_u32 s{sT1}, s{sT1}, s{sKQ}
        s_add_u32 s{sT1}, s{sT1}, 63
        s_cmp_eq_u32 s{sJQ}, 3
        s_cselect_b32 s{sT0}, s{sT0}, s{sT1}
        s_cselect_b32 s{sSTj}, 0, 12
        s_mul_i32 s{sT1}, s{sT0}, 171
        s_lshr_b32 s{sT1}, s{sT1}, 9
        s_mul_i32 s{sT2}, s{sT1}, 3
        s_sub_u32 s{sT2}, s{sT0}, s{sT2}
        s_mul_i32 s{sCSo}, s{sT2}, {16*9216}
        s_mul_i32 s{sHV}, s{sT2}, 73728
        s_cmp_ge_u32 s{sT1}, 18
        s_cselect_b32 s{sSJ}, s{pWU}, s{pWG}
        s_cselect_b32 s{sSJ+1}, s{pWU+1}, s{pWG+1}
        s_cselect_b32 s{sT2}, 18, 0
        s_mov_b32 s{sSJ+2}, 5308416
        s_mov_b32 s{sSJ+3}, 0x20000
        s_lshl_b32 s{sT3}, s{sT1}, 11
        s_add_u32 s{sHV}, s{sHV}, s{sT3}
        s_lshl_b32 s{sT3}, s{sW}, 9
        s_add_u32 s{sHV}, s{sHV}, s{sT3}
        s_add_u32 s{sHV}, s{sHV}, {WS_CS}
        s_sub_u32 s{sT1}, s{sT1}, s{sT2}
        s_lshl_b32 s{sT1}, s{sT1}, 9
        s_lshl_b32 s{sT3}, s{sW}, 7
        s_add_u32 s{sT1}, s{sT1}, s{sT3}
        s_cmp_ge_u32 s{sT0}, 108
        s_cselect_b32 s{sCSo}, {OOB}, s{sCSo}
        s_cselect_b32 s{sHV}, {OOB}, s{sHV}
        s_cmp_eq_u32 s{sT0}, 108
        s_cselect_b32 s{sFexp}, 0, {OOB}
        v_lshrrev_b32 v{t1}, 4, v{L}
        v_bfe_u32 v{t2}, v{L}, 3, 1
        v_lshl_add_u32 v{t2}, v{t2}, 2, v{t1}
        v_mul_u32_u24 v{t2}, 9216, v{t2}
        v_and_b32 v{t3}, 7, v{L}
        v_lshl_add_u32 v{t2}, v{t3}, 4, v{t2}
        v_add_u32 v{vC0}, s{sT1}, v{t2}
        v_add_u32 v{vC1}, {8*9216}, v{vC0}
        s_lshl_b32 s{sT0}, s{sKQ}, 2
        s_add_u32 s{sT0}, s{sT0}, s{sW}
        s_add_u32 s{sSTj}, s{sSTj}, s{sT0}
        s_mul_i32 s{sT0}, s{sSTj}, 171
        s_lshr_b32 s{sT0}, s{sT0}, 9
        s_mul_i32 s{sT1}, s{sT0}, 3
        s_sub_u32 s{sT1}, s{sSTj}, s{sT1}
        s_cmp_lt_u32 s{sSTj}, 24
        s_cselect_b32 s{sSTo}, 0, {OOB}
        s_lshl_b32 s{sT2}, s{sRB}, 3
        s_add_u32 s{sT2}, s{sT2}, s{sT0}
        s_lshl_b32 s{sT2}, s{sT2}, 8
        s_lshl_b32 s{sT3}, s{sT1}, 15
        s_add_u32 s{sT2}, s{sT2}, s{sT3}
        s_add_u32 s{sT2}, s{sT2}, {WS_ST}
        s_add_u32 s{sSTj}, s{sT2}, s{sSTo}
        s_and_b32 s{sT2}, s{sT0}, 1
        s_lshl_b32 s{sT2}, s{sT2}, 10
        s_lshr_b32 s{sT0}, s{sT0}, 1
        s_add_u32 s{sT0}, s{sT0}, s{sT2}
        s_lshl_b32 s{sT2}, s{sRB}, 2
        s_add_u32 s{sT0}, s{sT0}, s{sT2}
        s_mul_i32 s{sT0}, s{sT0}, 1152
        s_lshl_b32 s{sT1}, s{sT1}, 7
        s_add_u32 s{sT0}, s{sT0}, s{sT1}
        v_and_b32 v{t2}, 15, v{L}
        v_mul_u32_u24 v{t3}, 73728, v{t2}
        v_lshl_add_u32 v{t3}, v{t1}, 4, v{t3}
        v_add_u32 v{vSt}, s{sT0}, v{t3}
        """)
        v = V2.append
        v(f"""
        s_lshl_b32 s{sT1}, s{sW}, 4
        v_and_b32 v{t1}, 15, v{L}
        v_add_u32 v{t1}, s{sT1}, v{t1}
        v_lshrrev_b32 v{t2}, 4, v{L}
        v_lshlrev_b32 v{t3}, 4, v{t2}
        v_lshrrev_b32 v{t4}, 1, v{t1}
        v_lshl_add_u32 v{t3}, v{t4}, 6, v{t3}
        v_and_b32 v{t4}, 1, v{t1}
        v_lshl_add_u32 v{vPub+7}, v{t4}, 13, v{t3}
        v_lshlrev_b32 v{t2}, 3, v{t2}
        v_lshl_add_u32 v{vPub}, v{t1}, 17, v{t2}
        v_sub_u32 v{t1}, 64, v{t1}
        v_and_b32 v{t1}, 63, v{t1}
        v_lshl_add_u32 v{vPub+1}, v{t1}, 17, v{t2}
        s_bfe_u32 s{sHook}, s2, 0x10005
        """)
        v(f"""
        v_and_b32 v{t2}, 1, v{L}
        v_lshlrev_b32 v{t2}, 4, v{t2}
        v_mov_b32 v{t3}, 0x3f80
        v_lshlrev_b32 v{t2}, v{t2}, v{t3}
        v_bfe_u32 v{t3}, v{L}, 1, 2
        s_mov_b32 s{sT0}, 0x3f803f80
        """)
        for p in range(4):
            v(f"v_cmp_eq_u32 vcc, {p}, v{t3}\nv_accvgpr_write_b32 a{aOne+p}, s{sT0}\ns_nop 0\nv_cndmask_b32 v{t4}, 0, v{t2}, vcc\nv_accvgpr_write_b32 a{aSel+p}, v{t4}")
    g1_, u1_ = pure_dmas(1)
    a(V[:1] if heavy else []); a(R[:nR1]); a(second); a(V[1:] if heavy else V)
    a([f"s_add_u32 m0, s{sW8K}, 32768", f"s_mov_b32 s{sKW}, 294912"] + g1_)
    a(ET); a(srd(sOUT, pOUT, 2359296))
    a(V2)
    a(f"s_add_u32 s{sW8K1}, s{sW8K}, 32768\ns_mov_b32 s{sCnt}, 6")
    a(W(vm=sh_tags(0) + pw_tags(0)))
    a("s_barrier")
    a(stamp(1))
    a([b_read(b, 0) for b in range(8)])
    for t in (0, 2, 4, 6, 8, 1, 3, 5): a(a_reads(t, 0))
    for i in range(4): a(f"v_xor_b32 v{vBr+i}, 64, v{vBr+i}")
    return P, R[nR1:]

ORDER = [0, 2, 4, 6, 8, "x", 1, 3, 5, 7]
def g1_mfmas(k, heavy):
    kp = k & 1
    def c(x): return '0' if k == 0 else x
    mf = []; st = {}; en = {}
    for t in ORDER:
        st[t] = len(mf)
        if t == "x":
            if heavy:
                for b in range(8):
                    mf.append(I(f"v_mfma_f32_16x16x32_bf16 {acc('z',b)}, {breg(kp,b)}, a[{aM+kp*4}:{aM+kp*4+3}], {c(acc('z',b))}", needs=[("M", k), ("B", k, b)]))
            for kk in ([] if heavy or k == 0 or k >= 16 else [0, 1] if k == 1 else [k]):
                s = aM + (kk & 1) * 12
                nd = [("SJ", kk, i) for i in range(3)]
                def c2(x): return '0' if kk == 0 else x
                mf.append(I(f"v_mfma_f32_16x16x32_bf16 a[{aSide}:{aSide+3}], a[{aSel}:{aSel+3}], a[{s}:{s+3}], {c2(vr(aSide,4,'a'))}", needs=nd))
                mf.append(I(f"v_mfma_f32_16x16x32_bf16 a[{aSide+4}:{aSide+7}], a[{aOne}:{aOne+3}], a[{s+8}:{s+11}], {c2(vr(aSide+4,4,'a'))}", needs=nd))
                mf.append(I(f"v_mfma_f32_16x16x32_bf16 a[{aSide+8}:{aSide+11}], a[{s+8}:{s+11}], a[{s+8}:{s+11}], {c2(vr(aSide+8,4,'a'))}", needs=nd))
                mf.append(I(f"v_mfma_f32_16x16x32_bf16 a[{aSide}:{aSide+3}], a[{aSel}:{aSel+3}], a[{s+4}:{s+7}], a[{aSide}:{aSide+3}]", needs=nd))
        else:
            for b in range(8):
                mf.append(I(f"v_mfma_f32_16x16x32_bf16 {acc(t,b)}, {areg(t)}, {breg(kp,b)}, {c(acc(t,b))}",
                            needs=[("A", k, t, 0), ("A", k, t, 1), ("B", k, b)]))
        en[t] = len(mf) - 1
    return mf, st, en

def g1_step(k, heavy, last=False):
    kp, D = k & 1, k >> 1
    mf, st, en = g1_mfmas(k, heavy)
    S = Sched(mf)
    S.fix(-1, W(lg=[("B", k, b) for b in range(8)] + [("A", k, 8, 1)]))
    r7 = a_reads(7, k)
    S.fix(0, r7[0]); S.fix(1, r7[1])
    if kp == 1: S.fix(6, W(vm=sh_tags(D + 1) + pw_tags(k + 1, 0)), "s_barrier")
    else: S.fix(6, W(vm=pw_tags(k + 1, 0)))
    if heavy: S.fix(st["x"] - 1, W(vm=[("M", k)]))
    elif 0 < k < 16: S.fix(st["x"] - 1, W(vm=[("SJ", k, 2)]))
    S.fix(st[1] - 1, W(lg=[("A", k, 7, 1)]))
    S.fix(en[1] - 1, W(vm=pw_tags(k + 1, 1)))
    for t in ORDER[:-1]:
        if t == "x": continue
        if t == 8 and kp == 1: S.put(st[8], f"v_xor_b32 v{vAm}, {SHX}, v{vAm}", hi=en[8] - 1)
        S.chain(en[t], a_reads(t, k + 1))
    xs = []
    for b in range(8):
        xs.append(b_read(b, k + 1))
        if b & 1: xs.append(f"v_xor_b32 v{vBr+(b>>1)}, {64 if kp == 1 else (64 ^ SHX)}, v{vBr+(b>>1)}")
    S.chain(10, xs, step=4.4)
    if not last:
        g, u = pure_dmas(k + 2)
        for x in g: x.needs = [("A", k, t, 1) for t in (0, 2, 4, 6)]
        for x in u: x.needs = [("A", k, t, 1) for t in (1, 3, 5, 7)]
        m0w = sW8K1 if kp else sW8K
        seq = [f"s_mov_b32 m0, s{m0w}"] + g + [[W(lg=[("A", k, 7, 1)]), "s_add_u32 m0, m0, 4096"]] + u + [f"s_add_u32 s{sKW}, s{sKW}, 294912"]
        if k == 0:
            x, mg, mu = shared_dmas(1)
            seq = [f"s_add_u32 m0, s{sW8K1}, 4096"] + pure_dmas(1)[1] + \
                  [f"s_mov_b32 s{sDX}, 128", f"s_xor_b32 m0, s{sM0S}, {SHX}", f"s_mov_b32 s{sDW}, 589824"] + x + \
                  [f"s_xor_b32 m0, s{sM0M}, {SHX}", mg, "s_add_u32 m0, m0, 4096", mu, f"s_mov_b32 s{sKW}, {2*294912}"] + seq + \
                  [f"s_mov_b32 s{sDX}, 256", f"s_mov_b32 s{sDW}, {2*589824}"]
        if kp == 1:
            x, mg, mu = shared_dmas(D + 2)
            seq += [f"s_mov_b32 m0, s{sM0S}"] + x + [f"s_mov_b32 m0, s{sM0M}", mg, "s_add_u32 m0, m0, 4096", mu]
            seq += [f"s_add_u32 s{sDW}, s{sDW}, 589824", f"s_add_u32 s{sDX}, s{sDX}, 128",
                    [f"s_cmp_eq_u32 s{sDX}, 1152", f"s_cselect_b32 s{sDX}, {OOB}, s{sDX}"],
                    f"s_xor_b32 s{sM0S}, s{sM0S}, {SHX}", f"s_xor_b32 s{sM0M}, s{sM0M}, {SHX}"]
        if k == 0: S.chain(2, seq, step=(S.n - 4) / len(seq), cap=2)
        elif kp == 0: S.chain(2, seq, step=(en["x"] - 2) / len(seq))
        else: S.chain(2, seq, step=(S.n - 6) / len(seq))
        if heavy:
            p = S.put(en["x"] + 1, m_load(k + 2))
            if kp == 1:
                S.put(p + 1, f"v_lshl_add_u64 v[{vMa}:{vMa+1}], 64, 1, v[{vMa}:{vMa+1}]")
        else:
            if k == 0: S.chain(30, side_loads(0) + side_adv(0) + side_loads(1) + side_adv(1), step=3, cap=2)
            elif k == 1: S.chain(en["x"] + 1, side_loads(2) + side_adv(0) + side_loads(3) + side_adv(1), step=2, cap=2)
            else: S.chain(en["x"] + 1, side_loads(k + 2) + side_adv(k), step=3)
    return S, st, en

def poll_slow(label, base, off, exp, cmp="eq"):
    return as_items(f"""
    {label}:
    s_mov_b32 s{sSpin}, 0x40000
    {label}_l:
    s_sleep 8
    global_load_dword v{vFlag}, v{vZero}, s[{base}:{base+1}] offset:{off} sc1
    s_waitcnt vmcnt(0)
    v_readfirstlane_b32 s{sT0}, v{vFlag}
    s_sub_u32 s{sSpin}, s{sSpin}, 1
    s_cbranch_scc1 {label}_r
    s_cmp_{cmp}_u32 s{sT0}, {exp}
    s_cbranch_scc0 {label}_l
    s_branch {label}_r
    """)

def flag_check(label, exp, tag, cmp="eq"):
    return [W(vm=[tag]), f"v_readfirstlane_b32 s{sT0}, v{vFlag}", "s_nop 0", f"s_cmp_{cmp}_u32 s{sT0}, {exp}", f"s_cbranch_scc0 {label}", f"{label}_r:"]

sWs = [66, 67, 68, 69, 70, 71, 72, 73, 100]
sHb = [60, 61, 63, 101]
sXo = 51
def wd_dmas(stage):
    seq = [f"s_add_u32 m0, s{sW8K}, {MS[stage]}"]
    seq += [dma(vWd + i, sWD, f"s{sWs[stage]}", 1024 * i, ("wd", stage, i)) for i in range(4)]
    seq += [[f"s_add_u32 m0, m0, 4096", f"s_add_u32 s{sWs[stage]}, s{sWs[stage]}, {16*1152}"]]
    seq += [dma(vWd + i, sWD, f"s{sWs[stage]}", 1024 * i, ("wd", stage, 4 + i)) for i in range(4)]
    return seq
def wd_tags(stage): return [("wd", stage, i) for i in range(8)]
def wx_dmas():
    seq = [[f"s_mul_i32 s{sT2}, s{sW}, 10", f"s_lshl_b32 s{sT3}, s{sW}, 3"], [f"s_add_u32 s{sT3}, s{sT3}, 4", f"s_min_u32 s{sT2}, s{sT2}, s{sT3}"],
           [f"s_lshl_b32 s{sT3}, s{sT2}, 10", f"s_mul_i32 s{sT2}, s{sT2}, 9216"],
           [f"s_cmp_lt_u32 s{sW}, 2", f"s_cselect_b32 s{sT1}, {0x20000}, s{sXn}", f"s_cselect_b32 s{sXn}, 0, {OOB}"],
           [f"s_add_u32 m0, s{sT3}, s{sT1}", f"s_add_u32 s{sT2}, s{sT2}, s{sXo}"]]
    for i in range(10):
        seq.append(dma(vWd + 4, sWD, f"s{sT2}", 1024 * (i % 4), ("wx", i)))
        if i == 3: seq.append([f"s_add_u32 m0, m0, 4096", f"s_add_u32 s{sT2}, s{sT2}, {9216+3072}"])
        elif i == 7:
            seq += [[f"s_add_u32 s{sT2}, s{sT2}, {9216+3072}", f"s_add_u32 m0, m0, 4096"], [f"s_lshr_b32 s{sT3}, s{sXn}, 13", f"s_or_b32 m0, m0, s{sT3}"],
                    f"s_or_b32 s{sT2}, s{sT2}, s{sXn}"]
        elif i < 9: seq.append(f"s_add_u32 s{sT2}, s{sT2}, {9216-1024}")
    return [f"s_mov_b32 s{sXn}, {0x18000 - 20 * 1024}"] + seq
sXn = 50
def wx_tags(): return [("wx", i) for i in range(10)]

vH, vHm = vWo, vBr
sQ0, sQ1, sQm = sKW, sDW, sDX
sL0, sL1, sLm = 40, 41, 43
def g1_tail(heavy, OL):
    tg = "h" if heavy else "l"
    L = vLane
    t5, one = vT + 4, vT + 5
    out = []
    S0, st, en = g1_step(16, heavy, last=True)
    csr = [vCS + 2 * t for t in range(5)] + [vT, vT + 2, vMg, 32]
    str_ = [0, 4]
    def side_in(tagged):
        o = [f"buffer_load_dwordx3 v[{str_[b]}:{str_[b]+2}], v{vS+2}, s[{sWS}:{sWS+3}], s{sDX} offen offset:{256*b} sc1" for b in range(2)]
        o += [f"buffer_load_dwordx2 v[{csr[t]}:{csr[t]+1}], v{vS}, s[{sWS}:{sWS+3}], s{sDW if t & 1 else sKW} offen offset:{128*(t>>1)} sc1" for t in range(8)]
        o += [f"buffer_load_dwordx2 v[{csr[8]}:{csr[8]+1}], v{vS+1}, s[{sWS}:{sWS+3}], s{sKW} offen sc1",
              f"buffer_load_dword v{vFlag}, v{vS+3}, s[{sWS}:{sWS+3}], s{sCnt} offen sc1"]
        return [I(x, vm=("sd", i)) for i, x in enumerate(o)] if tagged else o
    def side_chk():
        o = [f"v_xor_b32 v{vFlag}, s{sNonce}, v{vFlag}"]
        o += [f"v_bitop3_b32 v{vFlag}, v{vFlag}, v{r}, s{sNonce} bitop3:0xf6" for r in [x + 2 for x in str_] + [x + 1 for x in csr]]
        return [f"v_bfe_i32 v{t5}, v{vS}, 30, 1"] + o + [f"v_bfi_b32 v{vFlag}, v{t5}, 0, v{vFlag}", f"v_cmp_ne_u32 vcc, 0, v{vFlag}"]
    OL.append(as_items([f"L_side_{tg}:", f"s_mov_b32 s{sSpin}, 0x40000", f"L_side_{tg}_l:", "s_sleep 8"] + side_in(False) + ["s_waitcnt vmcnt(0)"] + side_chk() +
                       [f"s_sub_u32 s{sSpin}, s{sSpin}, 1", f"s_cbranch_scc1 L_side_{tg}_r", f"s_cbranch_vccnz L_side_{tg}_l", f"s_branch L_side_{tg}_r"]))
    aSt = 108
    sg = [I(f"v_mfma_f32_16x16x4_f32 a[{aSt+4*i}:{aSt+4*i+3}], v{one}, v{str_[i>>1]+(i&1)}, 0", needs=[("sd", 11)]) for i in range(4)]
    S = S0
    n0 = S.n
    S.mf += sg; S.n += 4
    for p in range(n0, S.n): S.slots[p] = []; S.cost[p] = 0
    S.slots[-1] = as_items(f"s_mov_b32 s{sKW}, {WS_CS}\ns_mov_b32 s{sDW}, {WS_CS+36864}\ns_mov_b32 s{sDX}, {WS_ST}\ns_mov_b32 s{sCnt}, {WS_FT}") + S.slots[-1]
    ps = S.chain(1, side_in(True), cap=2)
    seq = []
    if heavy:
        seq += [[f"s_lshl_b32 s{sM0S}, s{sW}, 11", f"s_add_u32 m0, s{sM0S}, {FRE}"], f"s_mov_b32 s{sM0M}, {16*64*4096 - 1024}",
                dma(vFd, sDR, "0", 0, ("F", 0, 0)), dma(vFd, sDR, f"s{sM0M}", 1024, ("F", 0, 1)),
                f"s_add_u32 m0, s{sM0S}, {FIM}", dma(vFd, sDI, "0", 0, ("F", 1, 0)), dma(vFd, sDI, f"s{sM0M}", 1024, ("F", 1, 1))]
    seq += wd_dmas(0)
    S.chain(ps[-1] + 2, seq, cap=2, step=(n0 - ps[-1] - 6) / len(seq))
    S.chain(20, [f"v_mov_b32 v{vZero}, 0", f"v_or_b32 v{vSig}, s{sW}, v{L}", f"v_cmp_eq_u32 vcc, 0, v{vSig}", f"v_mov_b32 v{vSig}, {OOB}",
                 f"v_mov_b32 v{one}, 1.0", f"v_cndmask_b32 v{vSig}, v{vSig}, v{vZero}, vcc"], cap=2)
    pw_ = n0 - 14
    S.fix(pw_, W(vm=[("sd", 11)]))
    S.chain(pw_ + 1, side_chk(), cap=3, sep=0, step=0.7, hi=n0 - 3)
    S.fix(n0 - 1, f"s_cbranch_vccnz L_side_{tg}", f"L_side_{tg}_r:")
    out += S.out()
    if C.fine: out += as_items(stamp(15))
    k = 17
    mf, st, en = g1_mfmas(k, heavy)
    S = Sched(mf)
    S.fix(-1, W(lg=[("B", k, b) for b in range(8)] + [("A", k, 8, 1)]))
    r7 = a_reads(7, k)
    S.fix(0, r7[0]); S.fix(1, r7[1])
    S.fix(9, W(vm=sh_tags(9), lg=[("A", k, 7, 1)]), "s_barrier")
    if heavy: S.fix(st["x"] - 1, W(vm=[("M", k)]))
    m_, q_ = [0, 4], [1, 5]
    stc = as_items(f"s_mov_b32 s{sKW}, 0x3ae38e39\ns_mov_b32 s{sDW}, 0x3727c5ac")
    stc += as_items(f"""
    v_and_b32 v{vBr}, 15, v{L}
    s_lshl_b32 s{sDX}, s{sW}, 9
    s_add_u32 s{sDX}, s{sDX}, {STAT}
    v_lshl_add_u32 v{vBr+1}, v{vBr}, 4, s{sDX}
    s_lshl_b32 s{sDX}, s{sW}, 7
    s_add_u32 s{sDX}, s{sDX}, {STAT+2048}
    v_lshl_add_u32 v{vBr+2}, v{vBr}, 2, s{sDX}
    """)
    for b in range(2):
        stc += as_items(f"v_accvgpr_read_b32 v{m_[b]}, a{aSt+8*b}\nv_accvgpr_read_b32 v{q_[b]}, a{aSt+8*b+4}")
    seqs = []
    for b in range(2):
        m, q = m_[b], q_[b]
        seqs.append(as_items(f"""
        v_mul_f32 v{m}, s{sKW}, v{m}
        v_mul_f32 v{q}, s{sKW}, v{q}
        v_fma_f32 v{q}, -v{m}, v{m}, v{q}
        v_max_f32 v{q}, 0, v{q}
        v_cvt_pk_bf16_f32 v{q}, v{q}, v{q}
        v_cvt_pk_bf16_f32 v{m}, -v{m}, -v{m}
        v_lshlrev_b32 v{q}, 16, v{q}
        v_add_f32 v{q}, s{sDW}, v{q}
        v_cvt_pk_bf16_f32 v{q}, v{q}, v{q}
        v_lshlrev_b32 v{q}, 16, v{q}
        v_sqrt_f32 v{q}, v{q}
        """))
    for x, y in zip(*seqs): stc += [x, y]
    for b in range(2): stc += as_items(f"v_cvt_pk_bf16_f32 v{q_[b]}, v{q_[b]}, v{q_[b]}")
    for b in range(2): stc += as_items(f"v_lshlrev_b32 v{q_[b]}, 16, v{q_[b]}")
    for b in range(2): stc += as_items(f"v_rcp_f32 v{q_[b]}, v{q_[b]}")
    stc += as_items(f"""
    ds_write2_b32 v{vBr+1}, v{m_[0]}, v{vZero} offset0:0 offset1:1
    ds_write2_b32 v{vBr+1}, v{vZero}, v{m_[0]} offset0:2 offset1:3
    ds_write2_b32 v{vBr+1}, v{m_[1]}, v{vZero} offset0:64 offset1:65
    ds_write2_b32 v{vBr+1}, v{vZero}, v{m_[1]} offset0:66 offset1:67
    ds_write2_b32 v{vBr+2}, v{q_[0]}, v{q_[1]} offset0:0 offset1:16
    v_mul_f32 v{vR2}, v{q_[0]}, v{q_[0]}
    v_mul_f32 v{vR2b}, v{q_[1]}, v{q_[1]}
    """)
    ps = S.chain(2, stc, cap=2, sep=0, step=0.55)
    assert ps[-7] > 9
    pb = ps[-1] + 4
    S.fix(pb, W(vm=[("F", 1, 1)] * heavy), "s_waitcnt lgkmcnt(0)", "s_barrier")
    rd = []
    for bb in range(4):
        rd.append(f"v_xor_b32 v{vBr+3}, {bb*512}, v{vBr+1}")
        for x in range(2):
            rd.append(I(f"ds_read_b128 a[{8*bb+4*x}:{8*bb+4*x+3}], v{vBr+3} offset:{256*x}", lg=("nm", 2 * bb + x)))
    pr = S.chain(pb + 1, rd, cap=2, sep=0, step=0.7)
    S.chain(10, wx_dmas(), cap=3, step=2.2)
    cs = []
    for t in range(9):
        x, y = vCS + t, csr[t]
        cs += [f"v_cvt_pk_bf16_f32 v{t5}, v{y}, v{y}", f"v_lshlrev_b32 v{t5}, 16, v{t5}",
               f"v_sub_f32 v{t5}, v{y}, v{t5}", f"v_cvt_pk_bf16_f32 v{x}, v{y}, v{t5}"]
    cs.append(f"v_mov_b32 v{vCS+9}, 0")
    pc = S.chain(pb - 4, cs, cap=2, sep=0, step=0.6)
    u0, u1 = sM0M, sCnt
    pre = as_items(f"""
    s_mul_i32 s{u0}, s{sRB}, 144
    s_mul_i32 s{u1}, s{sJ}, 9
    s_add_u32 s{u0}, s{u0}, s{u1}
    s_lshl_b32 s{u0}, s{u0}, 13
    s_and_b32 s{u1}, s{sJ}, 1
    s_lshl_b32 s{sL0}, s{u1}, 13
    s_lshl_b32 s{sL1}, s{sW}, 14
    s_add_u32 s{sL0}, s{sL0}, s{sL1}
    s_add_u32 s{sL1}, s{sL0}, 8192
    s_add_u32 s{sQ0}, s{u0}, s{sL0}
    s_add_u32 s{sQ1}, s{u0}, s{sL1}
    s_xor_b32 s{u1}, s{u1}, 1
    s_mul_i32 s{sLm}, s{u1}, {HM}
    s_lshl_b32 s{u1}, s{u1}, 16
    s_add_u32 s{sQm}, s{u0}, s{u1}
    """) + [[f"s_cmp_eq_u32 s{sL1}, 0x10000", f"s_cselect_b32 s{sL1}, {HM}, s{sL1}"]] + as_items(f"""
    s_lshl_b32 s{u0}, s{sW}, 11
    v_lshl_add_u32 v{vH}, v{L}, 4, s{u0}
    v_xor_b32 v{vH+1}, 0x800, v{vH}
    v_xor_b32 v{vH+2}, 0x1000, v{vH}
    v_xor_b32 v{vH+3}, 0x1800, v{vH}
    v_mov_b32 v{vHl}, v{vH}
    v_lshrrev_b32 v{one}, 5, v{L}
    v_and_b32 v{t5}, 15, v{L}
    v_lshlrev_b32 v{t5}, 4, v{t5}
    v_lshl_add_u32 v{t5}, v{one}, 10, v{t5}
    v_bfe_u32 v{one}, v{L}, 4, 1
    v_xor_b32 v{one}, s{sW}, v{one}
    v_lshl_add_u32 v{t5}, v{one}, 11, v{t5}
    s_lshl_b32 s{u1}, s{sW}, 8
    v_add_u32 v{vHm}, s{u1}, v{t5}
    v_xor_b32 v{vHm+1}, 0x1000, v{vHm}
    """)
    S.chain(max(pc[-1], pr[-1]) + 1, pre, cap=3, sep=0, step=0.4)
    out += S.out()
    return out

def mid_touch(tg):
    return as_items(f"""
    buffer_load_dword v{vTch}, v{vTch}, s[{sWD}:{sWD+3}], 0 offen
    s_bitcmp1_b32 s{sW}, 0
    s_cbranch_scc1 L_mt_{tg}
    buffer_load_dword v{vTch+1}, v{vTch+1}, s[{sDR}:{sDR+3}], 0 offen
    s_branch L_mid_r{tg}
    L_mt_{tg}:
    buffer_load_dword v{vTch+1}, v{vTch+1}, s[{sDI}:{sDI+3}], 0 offen
    s_branch L_mid_r{tg}
    """) if C.mtouch else as_items(f"s_branch L_mid_r{tg}")

def publish_side():
    L = vLane
    t = vCS
    P = as_items(f"""
    L_pub:
    """)
    for i in range(4): P += as_items(f"v_accvgpr_read_b32 v{t+i}, a{aSide+i}")
    P += as_items(f"v_accvgpr_read_b32 v{t+4}, a{aSide+4}")
    for i in range(4): P += as_items(f"v_accvgpr_read_b32 v{vT+i}, a{aSide+8+i}")
    for i in range(4): P += as_items(f"v_add_f32_dpp v{t+i}, v{t+i}, v{t+i} row_ror:8 row_mask:0xf bank_mask:0xf")
    P += as_items(f"""
    v_and_b32 v{vT+4}, 3, v{L}
    v_cmp_eq_u32 vcc, 1, v{vT+4}
    v_lshrrev_b32 v{vT+5}, 4, v{L}
    v_and_b32 v{t+8}, 15, v{L}
    v_cndmask_b32 v{t+5}, v{vT}, v{vT+1}, vcc
    v_cmp_eq_u32 vcc, 2, v{vT+4}
    v_mov_b32 v{t+6}, s{sNonce}
    s_mov_b32 s{sT0}, 0xff00ff00
    v_cndmask_b32 v{t+5}, v{t+5}, v{vT+2}, vcc
    v_cmp_eq_u32 vcc, 3, v{vT+4}
    s_mov_b32 s{sT1}, s{sT0}
    v_mov_b32 v{vT}, {OOB}
    v_cndmask_b32 v{t+5}, v{t+5}, v{vT+3}, vcc
    v_lshrrev_b32 v{vT+4}, 2, v{t+8}
    v_cmp_eq_u32 vcc, v{vT+4}, v{vT+5}
    v_lshlrev_b32 v{t+8}, 4, v{t+8}
    v_cndmask_b32 v{t}, v{t}, v{t+1}, s[{sT0}:{sT1}]
    v_cndmask_b32 v{t+8}, v{vT}, v{t+8}, vcc
    v_cndmask_b32 v{t+2}, v{t+2}, v{t+3}, s[{sT0}:{sT1}]
    v_cmp_lt_u32 vcc, 31, v{L}
    v_and_b32 v{t+9}, 7, v{L}
    v_lshlrev_b32 v{t+9}, 6, v{t+9}
    v_cndmask_b32 v{t}, v{t}, v{t+2}, vcc
    v_mov_b32 v{t+1}, s{sNonce}
    v_bfe_u32 v{vT}, v{L}, 4, 1
    v_lshl_add_u32 v{t+9}, v{vT}, 5, v{t+9}
    v_lshrrev_b32 v{vT}, 5, v{L}
    v_lshl_add_u32 v{t+9}, v{vT}, 4, v{t+9}
    v_and_b32 v{vT}, 8, v{L}
    v_add_u32 v{t+9}, v{vT}, v{t+9}
    buffer_store_dwordx2 v[{t}:{t+1}], v{t+9}, s[{sWS}:{sWS+3}], s{sHV} offen sc1
    buffer_store_dwordx4 v[{t+4}:{t+7}], v{t+8}, s[{sWS}:{sWS+3}], s{sSTj} offen sc1
    s_cmp_lg_u32 s{sFexp}, 0
    s_cbranch_scc1 L_pub_rl
    s_mov_b32 s{sT1}, {WS_T64}
    s_mov_b32 s{sT2}, {WS_T64+4096}
    buffer_store_dwordx4 a[{aT64}:{aT64+3}], v{vPub+7}, s[{sWS}:{sWS+3}], s{sT1} offen sc1
    buffer_store_dwordx4 a[{aT64+4}:{aT64+7}], v{vPub+7}, s[{sWS}:{sWS+3}], s{sT1} offen offset:2048 sc1
    buffer_store_dwordx4 a[{aT64+8}:{aT64+11}], v{vPub+7}, s[{sWS}:{sWS+3}], s{sT2} offen sc1
    buffer_store_dwordx4 a[{aT64+12}:{aT64+15}], v{vPub+7}, s[{sWS}:{sWS+3}], s{sT2} offen offset:2048 sc1
    s_lshl_b32 s{sT1}, s{sW}, 7
    s_add_u32 s{sT1}, s{sT1}, {WS_FT}
    s_waitcnt vmcnt(0)
    buffer_store_dword v{t+6}, off, s[{sWS}:{sWS+3}], s{sT1} sc1
    s_branch L_pub_rl
    L_midl:
    """)
    return P + mid_touch("l")

def hslow(label, off):
    return as_items(f"""
    {label}:
    s_mov_b32 s{sSpin}, 0x40000
    {label}_l:
    s_sleep 4
    buffer_load_dword v{vFlag}, off, s[{sWS}:{sWS+3}], s{off} sc1
    s_waitcnt vmcnt(0)
    v_readfirstlane_b32 s{sT0}, v{vFlag}
    s_sub_u32 s{sSpin}, s{sSpin}, 1
    s_cbranch_scc1 {label}_r
    s_cmp_eq_u32 s{sT0}, s{sNonce}
    s_cbranch_scc0 {label}_l
    s_branch {label}_r
    """)
sFo = [90, 91, 92, 93]
sG = [82, 83, 84]
def hflag_load(o): return I(f"buffer_load_dword v{vFlag}, off, s[{sWS}:{sWS+3}], s{sFo[o]} sc1", vm=("fl", o))
def uncounted(items):
    for it in items:
        if is_vmem(it.text): it.text = " " + it.text
    return items

vG2, vGX = 56, 120
vA3 = 244
vA2, vAX = 152, 168
vHl = vAr + 1
vE = 120
vFa = 29
aH, PD = 100, 12
aX = 196
DEF = 8
aOwn = list(range(196, 252, 4))
def g2acc(p, nn): return vG2 + (2 * p + nn) * 4 if p < 8 else vGX + (2 * (p - 8) + nn) * 4
def h_loads(q, soff):
    s = aH + (q % PD) * 8
    return [I(f"buffer_load_dwordx4 a[{s+4*n}:{s+4*n+3}], v{vHl}, s[{sWS}:{sWS+3}], {soff} offen{' offset:1024' if n else ''} sc1", vm=("h", q, n)) for n in range(2)]
def h_so(q):
    r, i = sM0W + (q & 1), q % 9
    if i % 3 == 0: return [f"s_add_u32 s{sM0S}, s{sHb[q // 9]}, s{sG[i // 3]}", f"s_mov_b32 s{r}, s{sM0S}"], f"s{r}"
    return [f"s_add_u32 s{r}, s{sM0S}, {8192 * (i % 3)}"], f"s{r}"
def a2reg(p, q):
    if p >= 8: return aX + 4 * (p - 8)
    if p < 2 and q > 36 - DEF: return aOwn[(q - (37 - DEF)) * 2 + p]
    return aA + 4 * p
def a2_reads(p, q):
    r = a2reg(p, q)
    if p < 8:
        off = MS[q // 4] + (q % 4) * 8192
        addr = vA2 + p
        if off >= 0x1C000: addr, off = vA3 + p, off - 0x1C000
        elif off >= 0x10000: addr, off = addr + 8, off - 0x10000
        return [I(f"ds_read_b64_tr_b16 a[{r+2*h}:{r+2*h+1}], v{addr} offset:{off+4096*h}", lg=("A2", q, p, h), needs=wd_tags(q // 4)) for h in range(2)]
    return [I(f"ds_read_b64_tr_b16 a[{r+2*h}:{r+2*h+1}], v{vAX+p-8} offset:{XA[q]-0x18000+2048*h}", lg=("A2", q, p, h), needs=wx_tags()) for h in range(2)]

def epilogue1(heavy, OL):
    tg = "h" if heavy else "l"
    L = vLane
    P = []; a = P.append
    a(stamp(2))
    def corr(t, b):
        cs = vCS + (t & ~1)
        nm = 4 * b + 2 * (t & 1)
        return I(f"v_mfma_f32_16x16x16_bf16 {acc(t,b)}, v[{cs}:{cs+1}], a[{nm}:{nm+1}], {acc(t,b)}", needs=[("nm", b)])
    units = [(qq, b) for qq in range(2) for b in range(8)] + [("m", bb) for bb in range(4)]
    def ucorr(u):
        if u[0] == "m": return [corr(8, 2 * u[1]), corr(8, 2 * u[1] + 1)]
        return [corr(4 * u[0] + x, u[1]) for x in range(4)]
    def uvalu(u):
        o = []
        if u[0] == "m":
            bb = u[1]
            r0, r1 = acc_loc(8, 2 * bb)[1], acc_loc(8, 2 * bb + 1)[1]
            o += [f"v_permlane32_swap_b32 v{r0+x}, v{r1+x}" for x in range(4)]
            o += [f"v_max_f32 v{r0+x}, 0, v{r0+x}" for x in range(4)]
            o += [f"v_mul_f32 v{r0+x}, v{r0+x}, v{r1+x}" for x in range(4)]
            H = acc_loc(8, 2 * (bb & ~1))[1]
            o += [f"v_cvt_pk_bf16_f32 v{H+2*(bb&1)+p}, v{r0+2*p}, v{r0+2*p+1}" for p in range(2)]
            if bb & 1:
                o += ["s_nop 1"] + [f"v_permlane16_swap_b32 v{H+p}, v{H+2+p}" for p in range(2)]
                o.append(I(f"buffer_store_dwordx4 v[{H}:{H+3}], v{vHm+(bb>>1)}, s[{sWS}:{sWS+3}], s{sQm} offen sc1", vm=("hs", u)))
                o += [f"v_add_u32 v{vT+4}, s{sLm}, v{vHm+(bb>>1)}", f"ds_write_b128 v{vT+4}, v[{H}:{H+3}]"]
            return o
        qq, b = u
        H = acc_loc(4 * qq, b)[1]
        for half in range(2):
            rg = acc_loc(4 * qq + 2 * half, b)[1]
            ku, ru = acc_loc(4 * qq + 2 * half + 1, b)
            o += [f"v_max_f32 v{rg+x}, 0, v{rg+x}" for x in range(4)]
            if ku == "a":
                o += [f"v_accvgpr_read_b32 v{vT+x}, a{ru+x}" for x in range(4)]
                ru = vT
            o += [f"v_mul_f32 v{rg+x}, v{rg+x}, v{ru+x}" for x in range(4)]
            o += [f"v_cvt_pk_bf16_f32 v{H+2*half+p}, v{rg+2*p}, v{rg+2*p+1}" for p in range(2)]
        o.append(I(f"buffer_store_dwordx4 v[{H}:{H+3}], v{vH+(b>>1)}, s[{sWS}:{sWS+3}], s{sQ1 if qq else sQ0} offen{' offset:1024' if b & 1 else ''} sc1", vm=("hs", u)))
        if not b & 1: o.insert(1, f"v_add_u32 v{vT+4}, s{sL1 if qq else sL0}, v{vH+(b>>1)}")
        o.append(f"ds_write_b128 v{vT+4}, v[{H}:{H+3}] offset:{1024*(b&1)}")
        return o
    a(W(lg=[("nm", 7)]))
    c0 = ucorr(units[0]) + ucorr(units[1])
    a(c0); a("s_nop 4")
    Z = []; z = Z.append
    z(f"""
    v_lshrrev_b32 v{vE}, 2, v{L}
    v_and_b32 v{vE+1}, 3, v{L}
    v_lshlrev_b32 v{vE+1}, 3, v{vE+1}
    v_and_b32 v{vE+2}, 7, v{vE}
    v_lshl_add_u32 v{vE+2}, v{vE+2}, 5, v{vE+1}
    v_lshl_add_u32 v{vA2}, v{vE}, 8, v{vE+2}
    v_bfe_u32 v{vE+2}, v{vE}, 1, 2
    v_lshl_add_u32 v{vE+2}, v{vE+2}, 5, v{vE+1}
    v_lshl_add_u32 v{vE+2}, v{vE}, 7, v{vE+2}
    v_add_u32 v{vAX}, 0x18000, v{vE+2}
    v_add_u32 v{vA2+8}, 0x10000, v{vA2}
    """)
    for p in range(1, 8): z(f"v_xor_b32 v{vA2+p}, {32*p}, v{vA2}\nv_xor_b32 v{vA2+8+p}, {32*p}, v{vA2+8}")
    for p in range(1, 4): z(f"v_xor_b32 v{vAX+p}, {32*p}, v{vAX}")
    Z1 = []; z = Z1.append
    z(f"s_mul_i32 s{sT0}, s{sRB}, 144\ns_mul_i32 s{sT1}, s{sKQ}, 36\ns_add_u32 s{sT0}, s{sT0}, s{sT1}")
    z(f"s_and_b32 s{sT2}, s2, 0xe7\ns_lshl_b32 s{sT2}, s{sT2}, 7\ns_add_u32 s{sT2}, s{sT2}, {WS_FH}")
    for o in range(4):
        z(f"""
        s_bfe_u32 s{sT1}, s{sSo}, {0x20000 + 8*o}
        s_lshl_b32 s{sT3}, s{sT1}, 10
        s_add_u32 s{sFo[o]}, s{sT3}, s{sT2}
        """)
        if o: z(f"s_mul_i32 s{sT1}, s{sT1}, 9\ns_add_u32 s{sT1}, s{sT1}, s{sT0}\ns_lshl_b32 s{sHb[o]}, s{sT1}, 13")
    for c in range(3):
        z([f"s_add_u32 s{sT1}, s{sR3}, {3*c}", f"s_cmp_ge_u32 s{sT1}, 9", f"s_cselect_b32 s{sT2}, 9, 0", f"s_sub_u32 s{sT1}, s{sT1}, s{sT2}", f"s_lshl_b32 s{sG[c]}, s{sT1}, 13"])
    D1, D2, D3 = [], [], []
    if heavy:
        vR, vZ, aFp, vP, vQ, vD = 56, 88, 32, 56, 104, 172
        g1, sgn, fa = vE + 6, vE + 7, vE + 8
        d = D1.append
        d(f"""
        v_lshrrev_b32 v{g1}, 4, v{L}
        s_lshl_b32 s{sT0}, s{sW}, 7
        s_add_u32 s{sT0}, s{sT0}, {STAT+2048}
        v_lshl_add_u32 v{fa}, v{g1}, 4, s{sT0}
        """)
        for bb in range(4):
            d(f"v_xor_b32 v{fa+1}, {bb*128}, v{fa}")
            for x in range(2): d(I(f"ds_read_b128 v[{vR+8*bb+4*x}:{vR+8*bb+4*x+3}], v{fa+1} offset:{64*x}", lg=("r", 2 * bb + x)))
        d(f"""
        v_bfe_u32 v{fa}, v{L}, 2, 2
        v_lshl_add_u32 v{fa}, v{g1}, 2, v{fa}
        v_lshlrev_b32 v{fa}, 6, v{fa}
        v_and_b32 v{fa+1}, 1, v{g1}
        v_lshl_add_u32 v{fa}, v{fa+1}, 5, v{fa}
        v_and_b32 v{fa+1}, 3, v{L}
        v_lshl_add_u32 v{fa}, v{fa+1}, 3, v{fa}
        s_lshl_b32 s{sT0}, s{sW}, 11
        s_add_u32 s{sT0}, s{sT0}, {FRE}
        v_add_u32 v{fa}, s{sT0}, v{fa}
        """)
        for bb in range(4):
            for mt in range(2):
                d(f"v_xor_b32 v{fa+1}, {bb*2048 + mt*32}, v{fa}")
                for part in range(2):
                    f = aFp + ((bb * 2 + mt) * 2 + part) * 4
                    for h in range(2):
                        d(I(f"ds_read_b64_tr_b16 a[{f+2*h}:{f+2*h+1}], v{fa+1} offset:{part*(FIM-FRE)+1024*h}", lg=("F", bb, mt, part, h), needs=[("F", part, 0), ("F", part, 1)]))
            if bb == 0:
                d(f"""
                v_and_b32 v{sgn}, 8, v{L}
                v_cmp_eq_u32 vcc, 0, v{sgn}
                v_mov_b32 v{sgn}, 1.0
                """)
                d(W(lg=[("r", 7)]))
                d(f"v_cndmask_b32 v{sgn}, v{sgn}, -1.0, vcc".replace("v_cndmask_b32", "v_cndmask_b32_e64"))
            for b in (2 * bb, 2 * bb + 1):
                for x in range(4): d(f"v_accvgpr_read_b32 v{vQ+x}, a{aZ+4*b+x}")
                for x in range(4): d(I(f"v_mul_f32 v{vQ+x}, v{vQ+x}, v{vR+4*b+x}", needs=[("r", b)]))
                for p in range(2): d(f"v_cvt_pk_bf16_f32 v{vZ+2*b+p}, v{vQ+2*p}, v{vQ+2*p+1}")
        d = D2.append
        for bb in range(4):
            q = vQ + (bb & 1) * 8
            for mt in range(2):
                f = aFp + (bb * 2 + mt) * 8
                nd = [("F", bb, mt, 1, 1)]
                d(I(f"v_mfma_f32_16x16x32_bf16 v[{vP+(bb*2+mt)*4}:{vP+(bb*2+mt)*4+3}], a[{f}:{f+3}], v[{vZ+4*bb}:{vZ+4*bb+3}], 0", needs=nd))
                d(I(f"v_mfma_f32_16x16x32_bf16 v[{q+mt*4}:{q+mt*4+3}], a[{f+4}:{f+7}], v[{vZ+4*bb}:{vZ+4*bb+3}], 0", needs=nd))
            if bb == 0:
                d(f"""
                s_and_b32 s{sT0}, s{sW}, 1
                s_cmp_eq_u32 s{sT0}, 1
                s_mov_b32 s{sT0}, 0x03020100
                s_cselect_b32 s{sT0}, 0x01000302, s{sT0}
                s_add_u32 s{sT1}, s{sT0}, 0x04040404
                s_bitcmp1_b32 s{sW}, 1
                s_cselect_b32 s{sT2}, s{sT1}, s{sT0}
                s_cselect_b32 s{sT3}, s{sT0}, s{sT1}
                """)
            if bb >= 1:
                pb, pq = bb - 1, vQ + ((bb - 1) & 1) * 8
                d("s_nop 3")
                for mt in range(2):
                    for x in range(4):
                        d(f"v_fmac_f32_dpp v{vP+(pb*2+mt)*4+x}, v{pq+mt*4+x}, v{sgn} row_ror:8 row_mask:0xf bank_mask:0xf")
        d(f"""
        v_mul_u32_u24 v{fa}, {4*4608}, v{g1}
        v_and_b32 v{fa+1}, 7, v{L}
        v_lshl_add_u32 v{fa}, v{fa+1}, 4, v{fa}
        v_and_b32 v{fa+1}, 8, v{L}
        v_add_u32 v{fa}, v{fa+1}, v{fa}
        s_mul_i32 s{sT0}, s{sRB}, {32*4608}
        s_lshl_b32 s{sT1}, s{sHV}, 2
        s_add_u32 s{sT1}, s{sT1}, s{sW}
        s_lshl_b32 s{sT1}, s{sT1}, 7
        s_add_u32 s{sT0}, s{sT0}, s{sT1}
        s_add_u32 s{sT0}, s{sT0}, {WS_U}
        """)
        for mt in range(2):
            for x in range(4):
                d(f"v_fmac_f32_dpp v{vP+(6+mt)*4+x}, v{vQ+8+mt*4+x}, v{sgn} row_ror:8 row_mask:0xf bank_mask:0xf")
        d = D3.append
        kk = 0
        for mt in range(2):
            for x in range(4):
                dd = vD + 4 * kk; kk += 1
                p = [vP + (bb * 2 + mt) * 4 + x for bb in range(4)]
                d(f"""
                v_cvt_pk_bf16_f32 v{dd}, v{p[0]}, v{p[1]}
                v_cvt_pk_bf16_f32 v{dd+1}, v{p[2]}, v{p[3]}
                s_add_u32 s{sT1}, s{sT0}, {(16*mt+x)*4608}
                v_perm_b32 v{dd+2}, v{dd+1}, v{dd}, s{sT2}
                v_perm_b32 v{dd+3}, v{dd+1}, v{dd}, s{sT3}
                """)
                d(I(f"buffer_store_dwordx2 v[{dd+2}:{dd+3}], v{fa}, s[{sWS}:{sWS+3}], s{sT1} offen sc1", vm=("opt", "us", kk)))
    FS, XL = final_setup()
    extra = {i: [] for i in range(len(units))}; flows = []
    def spread(items, u0, u1):
        items = as_items(items); n = u1 - u0 + 1; flows.append(items)
        for i in range(n): extra[u0 + i] += items[i * len(items) // n:(i + 1) * len(items) // n]
    spread([Z1, FS], 3, 7)
    if heavy:
        spread(D1, 8, 12); spread([W(lg=[("F", 3, 1, 1, 1)]), D2], 13, 15); spread([D3, Z], 16, 19)
    else: spread(Z, 11, 15)
    for i, u in enumerate(units):
        va = uvalu(u)
        nx = ucorr(units[i + 2]) if i + 2 < len(units) else []
        step = max(1, len(va) // (len(nx) + 1))
        for jj, x in enumerate(va):
            a(x)
            if nx and (jj + 1) % step == 0: a(nx.pop(0))
        a(nx); a(extra[i])
    P[:] = as_items(P)
    for seq in flows: verify_flow(seq, P, "extra")
    a(stamp(3))
    a(f"v_add_u32 v{vT+4}, {HM}, v{vHl}")
    a(W(vm=wd_tags(0) + wx_tags())); a("s_waitcnt lgkmcnt(0)"); a("s_barrier")
    if C.fine: a(stamp(13))
    for q in range(9):
        for n in range(2):
            r = aH + q * 8 + 4 * n
            a(I(f"ds_read_b128 a[{r}:{r+3}], v{vHl if q < 8 else vT+4} offset:{(8192*q if q < 8 else 0)+1024*n}", lg=("h", q, n)))
    a(XL)
    a(f"""
    v_mov_b32 v{vT+6}, s{sNonce}
    v_mov_b32 v{vSigU}, {f"v{vSig}" if heavy else OOB}
    """)
    if C.fine: a(stamp(14))
    a("s_waitcnt lgkmcnt(0)"); a("s_barrier")
    if C.fine: a(stamp(24))
    for p in range(12): a(a2_reads(p, 0))
    w1 = as_items(wd_dmas(1))
    a(w1[0]); a("s_nop 0"); a(w1[1:7]); a("s_nop 0"); a(w1[7:])
    a(stamp(4))
    a(stamp(5))
    return P

aFA, aFB = 0, 32
vX = vCS
vXa = [34, 35, 36]
vUo = [37, 8, 9]
vSigW, vSigU = 3, 2
vU, vY = 172, 220
vPp, vXf, vTm, vXP = 72, 96, 244, 120
sPb, sPbX = 76, 77
sUo = [78, 79, 80, 81]
sPp = [82, 83, 84]
sFP, sFX, sXb, sXr = 85, 94, 95, 39

def final_setup():
    L = vLane
    P = []; a = P.append
    t = [vE + i for i in range(6)]
    g, n = t[0], t[1]
    a(f"""
    v_lshrrev_b32 v{g}, 4, v{L}
    v_and_b32 v{n}, 15, v{L}
    s_lshl_b32 s{sT0}, s{sRB}, 2
    s_add_u32 s{sT0}, s{sT0}, s{sW}
    s_and_b32 s{sT1}, s{sT0}, 31
    s_lshr_b32 s{sT2}, s{sRB}, 3
    s_lshl_b32 s{sCnt}, s{sJQ}, 7
    s_lshl_b32 s{sT3}, s{sKQ}, 5
    s_add_u32 s{sCnt}, s{sCnt}, s{sT3}
    s_cmp_ge_u32 s{sCnt}, 288
    s_cselect_b64 vcc, -1, 0
    s_cmp_lg_u32 s{sT1}, 0
    s_cselect_b32 s{sT3}, 63, 64
    v_lshl_add_u32 v{t[2]}, v{n}, 1, s{sT2}
    v_lshlrev_b32 v{t[5]}, 4, v{g}
    v_add_u32 v{t[5]}, {T64}, v{t[5]}
    """)
    for nn in range(2):
        for st_ in (1, 0):
            if st_: a(f"v_sub_u32 v{t[3]}, s{sT3}, v{t[2]}\nv_and_b32 v{t[3]}, 63, v{t[3]}")
            else: a(f"v_cndmask_b32 v{t[3]}, v{t[2]}, v{t[3]}, vcc")
            r = vFa + 2 * st_ + nn
            a(f"v_lshrrev_b32 v{r}, 1, v{t[3]}\nv_lshl_add_u32 v{r}, v{r}, 6, v{t[5]}\nv_and_b32 v{t[4]}, 1, v{t[3]}\nv_lshl_add_u32 v{r}, v{t[4]}, 13, v{r}")
        if nn == 0: a(f"v_add_u32 v{t[2]}, 32, v{t[2]}")
    a(f"v_lshlrev_b32 v{t[5]}, 3, v{g}")
    a(f"""
    s_sub_u32 s{sT2}, 32, s{sT1}
    s_and_b32 s{sT2}, s{sT2}, 31
    s_mul_i32 s{sPbX}, s{sT2}, 4608
    s_add_u32 s{sPbX}, s{sPbX}, {WS_U}
    s_cmp_ge_u32 s{sCnt}, 288
    s_cselect_b32 s{sT2}, s{sT2}, s{sT1}
    s_movk_i32 s{sT1}, 256
    s_cselect_b32 s{sT1}, -256, s{sT1}
    s_mul_i32 s{sT2}, s{sT2}, 4608
    s_add_u32 s{sPb}, s{sT2}, {WS_U}
    v_add_u32 v{t[2]}, s{sCnt}, v{n}
    v_subrev_u32 v{t[3]}, 1, v{t[2]}
    v_sub_u32 v{t[4]}, 575, v{t[2]}
    v_cndmask_b32 v{t[3]}, v{t[3]}, v{t[4]}, vcc
    v_mul_u32_u24 v{t[4]}, {32*4608}, v{g}
    v_lshl_add_u32 v{vUo[0]}, v{t[3]}, 4, v{t[4]}
    v_add_u32 v{vUo[1]}, s{sT1}, v{vUo[0]}
    s_lshl_b32 s{sT2}, s{sJ}, 2
    s_sub_u32 s{sT3}, 63, s{sT2}
    v_and_b32 v{t[3]}, 3, v{L}
    v_sub_u32 v{t[3]}, s{sT3}, v{t[3]}
    v_lshl_add_u32 v{vUo[2]}, v{t[3]}, 4, v{t[4]}
    v_cmp_eq_u32 vcc, 0, v{t[2]}
    v_mov_b32 v{t[4]}, {OOB}
    s_mul_i32 s{sT0}, s{sT0}, 1152
    v_cndmask_b32 v{vUo[0]}, v{vUo[0]}, v{t[4]}, vcc
    v_cmp_eq_u32 vcc, 0, v{L}
    s_lshl_b32 s{sT1}, s{sCnt}, 1
    s_add_u32 s{sT1}, s{sT1}, s{sT0}
    v_cndmask_b32 v{vSigW}, v{t[4]}, v{vZero}, vcc
    v_mul_u32_u24 v{t[2]}, 73728, v{n}
    v_add3_u32 v{vXa[0]}, v{t[2]}, v{t[5]}, s{sT1}
    v_add_u32 v{vXa[1]}, {16*73728}, v{vXa[0]}
    s_lshl_b32 s{sT2}, s{sT2}, 1
    s_add_u32 s{sT2}, s{sT2}, s{sT0}
    s_add_u32 s{sT2}, s{sT2}, 1024
    v_lshrrev_b32 v{t[3]}, 1, v{g}
    v_mul_u32_u24 v{t[3]}, {16*73728}, v{t[3]}
    v_and_b32 v{t[4]}, 1, v{g}
    v_lshl_add_u32 v{t[3]}, v{t[4]}, 2, v{t[3]}
    v_add3_u32 v{vXa[2]}, v{t[2]}, v{t[3]}, s{sT2}
    """)
    P2 = []; a = P2.append
    for p in range(2):
        for nn in range(2):
            r = vX + (2 * p + nn) * 2
            a(I(f"buffer_load_dwordx2 v[{r}:{r+1}], v{vXa[nn]}, s[{sX}:{sX+3}], 0 offen offset:{32*p}", vm=("x", p, nn)))
    a(I(f"buffer_load_dword v{vX+8}, v{vXa[2]}, s[{sX}:{sX+3}], 0 offen", vm=("x", 2)))
    return P, P2

def g2_all(OL):
    L = vLane
    t = [vT + i for i in range(6)]
    def tiles(q):
        if q < 9: return list(range(12))
        return list(range(8)) if q < 36 - DEF else list(range(2, 8))
    def mm(p, nn, q):
        c = g2acc(p, nn); h = aH + (q % PD) * 8 + 4 * nn; r = a2reg(p, q)
        return I(f"v_mfma_f32_16x16x32_bf16 v[{c}:{c+3}], a[{r}:{r+3}], a[{h}:{h+3}], {0 if q == 0 else vr(c,4)}",
                 needs=[("A2", q, p, 0), ("A2", q, p, 1), ("h", q, nn)])
    mf = []; b0 = {}
    for q in range(36):
        b0[q] = len(mf)
        mf += [mm(p, nn, q) for p in tiles(q) for nn in range(2)]
    b0[36] = len(mf)
    S = Sched(mf)
    bar = {}
    for q in range(36):
        b, T = b0[q], tiles(q); n = 2 * len(T)
        bd = q % 4 == 3 and q < 35
        def grp(j0, j1): return [("A2", q, p, 1) for p in T[j0:j1]]
        S.fix(b - 1, W(vm=[("h", q, 1)] if q >= 9 else None, lg=grp(0, 3)))
        if q == C.qsig:
            S.fix(b - 1, W(vm=[("hs", ("m", 3)), ("opt", "us", 8)]), "s_barrier",
                  f"buffer_store_dword v{vT+6}, v{vSig}, s[{sWS}:{sWS+3}], s{sFo[0]} offen sc1")
            psig = b - 1
        if bd:
            sg = q // 4
            frees = q in FREE.values()
            wv = wd_tags(sg + 1) + ([("T64", 3)] if q == 11 else [])
            bar[q] = S.fix(b + 5, W(vm=wv, lg=grp(3, 12) if frees else grp(3, 6)), "s_barrier")
            if not frees and len(T) > 6: S.fix(b + 11, W(lg=grp(6, 12)))
        else:
            for j in range(3, len(T), 3): S.fix(b + 2 * j - 1, W(lg=grp(j, j + 3)))
        if q == 35: continue
        nxt = [p for p in T if p in tiles(q + 1) or (q + 1 == 36 - DEF and p < 2)]
        i = 0
        for p in nxt:
            for h, x in enumerate(a2_reads(p, q + 1)):
                lo = b + 2 * T.index(p) + 1 + h
                if bd: lo = max(lo, b + 6 + (i * 2) // 3)
                S.fix(lo, x); i += 1
    def at(q, frac=0.0): return b0[q] + int(frac * (b0[q + 1] - b0[q]))
    S.chain(0, [f"v_add_u32 v{vA3+p}, 0xc000, v{vA2+8+p}" for p in range(8)], cap=2, step=3)
    checks = {9: 1, 18: 2, 27: 3}
    pos = 0; want = 0
    for q in range(9, 36):
        lo = max(pos + 1, b0[q - PD + 1] if q >= PD else 0, int(want))
        if q in checks:
            o = checks[q]
            lo = max(lo, b0[q - C.flead[o]], psig + 40)
            S.put(lo - 36, hflag_load(o), cap=2, hi=lo - 24)
            pos = S.fix(lo, flag_check(f"L_fl{o}", f"s{sNonce}", ("fl", o)))
            OL.append(hslow(f"L_fl{o}", sFo[o])); lastchk = pos
            lo = pos + 1
        su, so = h_so(q)
        ps = S.chain(lo, su + h_loads(q, so), cap=2, step=1.5)
        pos = ps[-1]
        want = lo + (C.hfast if q < C.hn else C.hpace)
        assert ps[-1] < b0[q] - 36, (q, ps, b0[q])
    tdma = [[f"s_lshl_b32 s{sT1}, s{sW}, 12", f"s_add_u32 m0, s{sT1}, {T64}"], [f"s_lshl_b32 s{sT1}, s{sW}, 11", f"s_add_u32 s{sT1}, s{sT1}, {WS_T64}"]]
    tdma += [I(f"buffer_load_dwordx4 v{vHl}, s[{sWS}:{sWS+3}], s{sT1} offen offset:{1024*i} sc1 lds", vm=("T64", i)) for i in range(4)]
    pos = 1
    for sg in range(2, 9):
        lo = max(pos + 1, bar[FREE[sg]] + 2 if sg in FREE else 0)
        if sg == 5:
            pos = S.chain(lo, tdma, cap=2, step=4)[-1]; lo = pos + 1
        ps = S.chain(lo, wd_dmas(sg), cap=2, step=(C.wfast if sg < 5 else C.wpace))
        pos = ps[-1]
        assert pos < bar[4 * sg - 1] - 40, (sg, pos, bar[4 * sg - 1])
    fr = []
    for st_, base in ((0, aFA), (1, aFB)):
        for nn in range(2):
            for ks in range(4):
                r = base + (nn * 4 + ks) * 4
                fr.append(I(f"ds_read_b128 a[{r}:{r+3}], v{vFa+2*st_+nn} offset:{2048*ks}", lg=("F2", st_, nn, ks, 1), needs=[("T64", 3)]))
    S.chain(at(12, 0.1), fr, cap=2, step=9)
    S.chain(psig + 6, [f"v_mov_b32 v{t[0]}, 1", f"buffer_atomic_add v{t[0]}, v{vSigU}, s[{sSJ}:{sSJ+3}], 0 offen offset:128 sc1"], cap=2)
    ch = as_items(f"""
    s_lshl_b32 s{sT2}, s2, 2
    s_add_u32 s{sT2}, s{sT2}, s{sW}
    s_lshl_b32 s{sT3}, s{sT2}, 7
    s_add_u32 s{sFP}, s{sT3}, {WS_FP}
    s_add_u32 s{sFX}, s{sT3}, {WS_FX}
    s_lshl_b32 s{sT3}, s{sT2}, 12
    s_add_u32 s{sXb}, s{sT3}, {WS_PX}
    s_lshl_b32 s{sT2}, s{sT2}, 13
    s_add_u32 s{sKW}, s{sT2}, {WS_PART}
    s_add_u32 s{sDW}, s{sKW}, 4096
    v_lshlrev_b32 v{t[4]}, 4, v{L}
    """)
    S.chain(at(4), ch, cap=2, step=2)
    vL16 = t[4]
    ch = []
    for p in range(8, 12):
        c = g2acc(p, 0)
        ch += [f"v_cvt_pk_bf16_f32 v{c+x}, v{c+2*x}, v{c+2*x+1}" for x in range(4)]
        ch.append(I(f"buffer_store_dwordx4 v[{c}:{c+3}], v{vL16}, s[{sWS}:{sWS+3}], s{sXb} offen offset:{(p-8)*1024} sc1", vm=("px", p)))
    S.chain(at(9, 0.4), ch, cap=2, step=2.5)
    S.fix(at(18, 0.5), W(vm=[("px", 11)]), I(f"buffer_store_dword v{vT+6}, v{vSigW}, s[{sWS}:{sWS+3}], s{sFX} offen sc1", vm="sigx"))
    ch = as_items(f"""
    v_and_b32 v{t[2]}, 3, v{L}
    v_xor_b32 v{t[2]}, s2, v{t[2]}
    s_lshl_b32 s{sT3}, s{sW}, 7
    v_lshl_add_u32 v{t[2]}, v{t[2]}, 9, s{sT3}
    s_and_b32 s{sT2}, s2, 0xe4
    v_and_b32 v{t[3]}, 3, v{L}
    v_bfe_u32 v{t[5]}, v{L}, 2, 2
    v_lshl_or_b32 v{t[3]}, v{t[5]}, 3, v{t[3]}
    v_or_b32 v{t[3]}, s{sT2}, v{t[3]}
    v_lshl_add_u32 v{t[3]}, v{t[3]}, 9, s{sT3}
    s_lshl_b32 s{sT2}, s{sT2}, 14
    s_lshl_b32 s{sT3}, s{sW}, 12
    s_add_u32 s{sT2}, s{sT2}, s{sT3}
    s_lshl_b32 s{sT3}, s{sJ}, 8
    s_add_u32 s{sT2}, s{sT2}, s{sT3}
    s_add_u32 s{sXr}, s{sT2}, {WS_PX}
    v_lshrrev_b32 v{t[5]}, 4, v{L}
    v_lshlrev_b32 v{t[5]}, 14, v{t[5]}
    v_and_b32 v{t[1]}, 15, v{L}
    v_lshl_add_u32 v{t[5]}, v{t[1]}, 4, v{t[5]}
    s_mov_b32 s{sFX}, {WS_FX}
    """)
    S.chain(at(19), ch, cap=2, step=2.5)
    pu0 = max(lastchk + 2, at(25, 0.5))
    S.put(pu0, I(f"global_load_dword v{vFlag}, v{vZero}, s[{pDBG}:{pDBG+1}] offset:128 sc1", vm="flu"), cap=2)
    S.put(pu0 + 2, I(f"buffer_load_dword v{t[0]}, v{t[3]}, s[{sWS}:{sWS+3}], s{sFX} offen sc1", vm="flx"), cap=2)
    pu = S.fix(at(C.qu, 0.5), flag_check("L_flu", 144, "flu", "ge"))
    OL.append(poll_slow("L_flu", pDBG, 128, 144, "ge"))
    px = S.fix(pu + 2, W(vm=["flx"]), f"v_cmp_ne_u32 vcc, s{sNonce}, v{t[0]}")
    S.fix(pu + 3, "s_cbranch_vccnz L_flx", "L_flx_r:")
    OL.append(as_items(f"""
    L_flx:
    s_mov_b32 s{sSpin}, 0x40000
    L_flx_l:
    s_sleep 4
    buffer_load_dword v{t[0]}, v{t[3]}, s[{sWS}:{sWS+3}], s{sFX} offen sc1
    s_waitcnt vmcnt(0)
    v_cmp_ne_u32 vcc, s{sNonce}, v{t[0]}
    s_sub_u32 s{sSpin}, s{sSpin}, 1
    s_cbranch_scc1 L_flx_r
    s_cbranch_vccnz L_flx_l
    s_branch L_flx_r
    """))
    ul = []
    for u in range(3):
        for ks in range(4):
            r = vU + (u * 4 + ks) * 4
            if u != 1: ul.append(f"s_add_u32 s{sUo[ks]}, s{sPb if u == 0 else sPbX}, {589824*ks}")
            ul.append(I(f"buffer_load_dwordx4 v[{r}:{r+3}], v{vUo[u]}, s[{sWS}:{sWS+3}], s{sUo[ks]} offen sc1", vm=("U", u, ks)))
    for i in range(4):
        ul.append(I(f"buffer_load_dwordx4 v[{vXP+4*i}:{vXP+4*i+3}], v{t[5]}, s[{sWS}:{sWS+3}], s{sXr} offen sc1", vm=("xp", i)))
        if i < 3: ul.append(f"s_add_u32 s{sXr}, s{sXr}, 131072")
    S.chain(pu + 4, ul, cap=2, step=(S.n - pu - 8) / len(ul))
    for q in range(37 - DEF, 36):
        lo = max(at(36 - DEF), bar[4 * (q // 4) - 1] + 1) + (q % 4) * 10
        S.chain(lo, a2_reads(0, q) + a2_reads(1, q), cap=2, step=2)
    if C.fine:
        for i, q in enumerate((4, 9, 14, 19, 24, 28, 32)): S.fix(b0[q] - 1, stamp(25 + i))
    out = S.out()
    if C.g2x:
        o2 = []
        for x in out:
            tx = x.text
            kill = ("l" in C.g2x and tx.startswith("ds_read_b64")) or ("d" in C.g2x and tx.endswith(" lds")) or \
                   ("h" in C.g2x and tx.startswith("buffer_load_dwordx4 a[")) or ("b" in C.g2x and tx == "s_barrier") or \
                   ("u" in C.g2x and tx.startswith("buffer_load_dwordx4 v[")) or ("s" in C.g2x and tx.startswith("buffer_store_dwordx4"))
            if kill:
                y = I("SKIP"); y.key = (x.vm, x.lg); o2.append(y)
            else: o2.append(x)
        out = o2
    out += as_items(stamp(6))
    mf = [mm(p, nn, q) for q in range(36 - DEF, 36) for p in range(2) for nn in range(2)]
    ny = len(mf)
    for ks in range(4):
        for u in range(3):
            for nn in range(2):
                y = vY + (2 * u + nn) * 4
                ru, rf = vU + (u * 4 + ks) * 4, (aFB if u == 2 else aFA) + (nn * 4 + ks) * 4
                mf.append(I(f"v_mfma_f32_16x16x32_bf16 v[{y}:{y+3}], v[{ru}:{ru+3}], a[{rf}:{rf+3}], {0 if ks == 0 else vr(y,4)}",
                            needs=[("U", u, ks), ("F2", int(u == 2), nn, ks, 1)]))
    S = Sched(mf)
    S.fix(-1, W(lg=[("A2", 35, 1, 1)]))
    S.fix(ny - 1, W(vm=[("U", 2, 3)]))
    ch = []
    for p in range(2, 8):
        c = g2acc(p, 0)
        ch += [f"v_cvt_pk_bf16_f32 v{c+x}, v{c+2*x}, v{c+2*x+1}" for x in range(4)]
        so, off = [(sKW, p * 1024), (sDW, (p - 4) * 1024)][p // 4]
        ch.append(I(f"buffer_store_dwordx4 v[{c}:{c+3}], v{vL16}, s[{sWS}:{sWS+3}], s{so} offen offset:{off} sc1", vm=("ps", p)))
    ps = S.chain(0, ch, cap=2, sep=0, step=0.55)
    ad = as_items(f"""
    s_mov_b32 s{sT3}, 0xbfb8aa3b
    s_sub_u32 s{sT1}, s{sKW}, {WS_PART}
    s_xor_b32 s{sT2}, s{sT1}, {1*32768}
    s_add_u32 s{sPp[0]}, s{sT2}, {WS_PART+2048}
    s_xor_b32 s{sT2}, s{sT1}, {2*32768}
    s_add_u32 s{sPp[1]}, s{sT2}, {WS_PART+4096}
    s_xor_b32 s{sT2}, s{sT1}, {3*32768}
    s_add_u32 s{sPp[2]}, s{sT2}, {WS_PART+6144}
    s_mov_b32 s{sT2}, 0xffff0000
    s_mov_b32 s{sT1}, {WS_FP}
    s_mov_b32 s{sSpin}, 0x40000
    s_mov_b32 s{sMk0}, 0
    s_mov_b32 s{sMk0+1}, -1
    s_mov_b32 s{sMk1}, s{sT2}
    s_mov_b32 s{sMk1+1}, s{sT2}
    """)
    V = vXP + 16
    ad.append(W(vm=[("xp", 3)]))
    for i in range(4):
        for d in range(4):
            r = vXP + 4 * i + d
            if i == 0: ad += [I(f"v_lshlrev_b32 v{V+2*d}, 16, v{r}", needs=[("xp", i)]), I(f"v_and_b32 v{V+2*d+1}, s{sT2}, v{r}")]
            else:
                ad += [I(f"v_lshlrev_b32 v{V+8}, 16, v{r}", needs=[("xp", i)]), I(f"v_and_b32 v{V+9}, s{sT2}, v{r}"),
                       I(f"v_add_f32 v{V+2*d}, v{V+2*d}, v{V+8}"), I(f"v_add_f32 v{V+2*d+1}, v{V+2*d+1}, v{V+9}")]
    S.chain(ps[-1] + 1, ad, cap=2, sep=0, step=0.5)
    out += S.out()
    P = []; a = P.append
    a(W(vm=[("ps", 7)]))
    a(I(f"buffer_store_dword v{vT+6}, v{vSigW}, s[{sWS}:{sWS+3}], s{sFP} offen sc1", vm="sigp"))
    a(stamp(7))
    for i in range(9):
        a([I(f"v_lshlrev_b32 v{vXf+2*i}, 16, v{vX+i}", needs=[("x", 2)]), I(f"v_and_b32 v{vXf+2*i+1}, s{sT2}, v{vX+i}")])
    a("s_nop 1")
    for k in range(4): a(f"v_permlane32_swap_b32 v{V+k}, v{V+4+k}")
    for k in range(4): a(f"v_add_f32 v{V+k}, v{V+k}, v{V+4+k}")
    y0, y1 = vY + 16, vY + 20
    for x in range(4): a(f"v_cndmask_b32 v{y0+x}, v{y0+x}, v{y1+x}, s[{sMk0}:{sMk0+1}]")
    for k in range(2): a(f"v_permlane16_swap_b32 v{V+k}, v{V+2+k}")
    for k in range(2): a(f"v_add_f32 v{V+k}, v{V+k}, v{V+2+k}")
    for x in range(2): a(f"v_cndmask_b32 v{y0+x}, v{y0+x}, v{y0+2+x}, s[{sMk1}:{sMk1+1}]")
    a(f"v_cndmask_b32 v{y0+2}, v{vR2}, v{vR2b}, s[{sMk0}:{sMk0+1}]")
    def finish(d, cnt, r2, y, xf, tmp):
        o = []
        o += [f"v_mul_f32 v{d+x}, v{d+x}, v{r2}" for x in range(cnt)]
        o += [f"v_mul_f32 v{tmp+x}, s{sT3}, v{d+x}" for x in range(cnt)]
        o += [f"v_exp_f32 v{tmp+x}, v{tmp+x}" for x in range(cnt)]
        o += [f"v_mul_f32 v{d+x}, v{d+x}, v{y+x}" for x in range(cnt)]
        o += [f"v_add_f32 v{tmp+x}, 1.0, v{tmp+x}" for x in range(cnt)]
        o += [f"v_rcp_f32 v{tmp+x}, v{tmp+x}" for x in range(cnt)]
        if cnt < 4: o.append("s_nop 0")
        o += [f"v_fmac_f32 v{xf+x}, v{d+x}, v{tmp+x}" for x in range(cnt)]
        o += [f"v_cvt_pk_bf16_f32 v{d+p}, v{xf+2*p}, v{xf+2*p+1}" for p in range(cnt // 2)]
        return o
    tmp = vTm
    a(finish(V, 2, y0 + 2, y0, vXf + 16, tmp + 4))
    a(f"buffer_store_dword v{V}, v{vXa[2]}, s[{sOUT}:{sOUT+3}], 0 offen")
    a(f"""
    L_pp:
    buffer_load_dword v{vFlag}, v{t[2]}, s[{sWS}:{sWS+3}], s{sT1} offen sc1
    s_waitcnt vmcnt(0)
    v_cmp_ne_u32 vcc, s{sNonce}, v{vFlag}
    s_sub_u32 s{sSpin}, s{sSpin}, 1
    s_cbranch_scc1 L_pp_r
    s_cbranch_vccnz L_pp
    L_pp_r:
    """)
    a(stamp(8))
    for p in range(2):
        for x in range(3):
            r = vPp + (2 * x + p) * 4
            a(I(f"buffer_load_dwordx4 v[{r}:{r+3}], v{vL16}, s[{sWS}:{sWS+3}], s{sPp[x]} offen offset:{1024*p} sc1", vm=("pl", x, p)))
    for p in range(2):
        a(W(vm=[("pl", 2, p)]))
        for nn in range(2):
            c = g2acc(p, nn)
            for x in range(3):
                r = vPp + (2 * x + p) * 4 + 2 * nn
                a(I(f"v_lshlrev_b32 v{tmp}, 16, v{r}", needs=[("pl", x, p)]))
                a(f"""
                v_and_b32 v{tmp+1}, s{sT2}, v{r}
                v_lshlrev_b32 v{tmp+2}, 16, v{r+1}
                v_and_b32 v{tmp+3}, s{sT2}, v{r+1}
                """)
                for i in range(4): a(f"v_add_f32 v{c+i}, v{c+i}, v{tmp+i}")
            a(finish(c, 4, vR2 if nn == 0 else vR2b, vY + (2 * p + nn) * 4, vXf + (2 * p + nn) * 4, tmp + 4))
            a(f"buffer_store_dwordx2 v[{c}:{c+1}], v{vXa[nn]}, s[{sOUT}:{sOUT+3}], 0 offen offset:{32*p}")
    return out + as_items(P)

def ts_store():
    return as_items(f"""
    s_waitcnt vmcnt(0)
    s_memtime s[0:1]
    s_memrealtime s[98:99]
    s_waitcnt lgkmcnt(0)
    v_writelane_b32 v{vTSV}, s0, 9
    v_writelane_b32 v{vTSV}, s98, 11
    s_lshl_b32 s{sT0}, s2, 2
    s_add_u32 s{sT0}, s{sT0}, s{sW}
    s_lshl_b32 s{sT0}, s{sT0}, 8
    s_add_u32 s{sT0}, s{sT0}, {WS_TS}
    v_lshlrev_b32 v0, 2, v{vLane}
    buffer_store_dword v{vTSV}, v0, s[{sWS}:{sWS+3}], s{sT0} offen
    """)

def path(heavy, shared, OL):
    tg = "h" if heavy else "l"
    p = Prog()
    if C.ts:
        p.add("s_memrealtime s[98:99]\ns_memtime s[100:101]\ns_waitcnt lgkmcnt(0)", f"v_writelane_b32 v{vTSV}, s98, 10", f"v_writelane_b32 v{vTSV}, s100, 12")
    pro, later = prologue(heavy)
    p.add(pro)
    S0 = g1_step(0, heavy)[0]
    S0.slots[-1] = as_items([f"v_mov_b32 v{vR2}, 0", I(f"global_load_dword v{vR2}, v{vR2}, s[{pDBG}:{pDBG+1}] offset:8 sc1", vm="fl_nonce")]) + S0.slots[-1]
    S1 = g1_step(1, heavy)[0]
    nl = len(later) // 2
    while "v_cmp" in "".join(x.text for x in later[nl - 4:nl]): nl += 1
    S0.chain(8, later[:nl], cap=3, sep=0, step=(S0.n - 10) / nl); S1.chain(8, later[nl:], cap=3, sep=0, step=(S1.n - 10) / (len(later) - nl))
    o01 = S0.out() + S1.out()
    verify_flow(later, o01, "later")
    p.add(o01)
    p.add(W(vm=["fl_nonce"]), f"v_readfirstlane_b32 s{sNonce}, v{vR2}", "s_nop 0", f"s_cmp_lg_u32 s{sNonce}, 0", f"s_cbranch_scc0 L_nonce_{tg}", f"L_nonce_{tg}_r:")
    OL.append(as_items(f"""
    L_nonce_{tg}:
    s_mov_b32 s{sSpin}, 0x40000
    L_nonce_{tg}_l:
    s_sleep 8
    v_mov_b32 v{vR2}, 0
    global_load_dword v{vR2}, v{vR2}, s[{pDBG}:{pDBG+1}] offset:8 sc1
    s_waitcnt vmcnt(0)
    v_readfirstlane_b32 s{sNonce}, v{vR2}
    s_sub_u32 s{sSpin}, s{sSpin}, 1
    s_cbranch_scc1 L_nonce_{tg}_r
    s_cmp_lg_u32 s{sNonce}, 0
    s_cbranch_scc0 L_nonce_{tg}_l
    s_branch L_nonce_{tg}_r
    """))
    if not heavy:
        tl = [f"s_cmp_lg_u32 s{sFexp}, 0", "s_cbranch_scc1 L_not64"]
        for ks in range(4):
            tl += [f"buffer_load_dwordx2 a[{aT64+4*ks}:{aT64+4*ks+1}], v{vPub}, s[{sDR}:{sDR+3}], 0 offen offset:{32*ks}",
                   f"buffer_load_dwordx2 a[{aT64+4*ks+2}:{aT64+4*ks+3}], v{vPub+1}, s[{sDI}:{sDI+3}], 0 offen offset:{32*ks}"]
        p.add(uncounted(as_items(tl + ["L_not64:"])))
    if C.fine: p.add(stamp(23))
    p.add(f".p2align 6\nL_g1_{tg}:")
    def body(i):
        D = i + 1
        o = g1_step(2 * D, heavy)[0].out() + g1_step(2 * D + 1, heavy)[0].out()
        if C.fine: o += as_items(["s_memtime s[0:1]", f"s_add_u32 m0, s{sCnt}, 16", "s_waitcnt lgkmcnt(0)", f"v_writelane_b32 v{vTSV}, s0, m0"])
        if not heavy: o += as_items(f"s_cmp_eq_u32 s{sCnt}, 2\ns_cbranch_scc1 L_pub\nL_pub_rl:")
        o += as_items(f"s_cmp_eq_u32 s{sCnt}, s{sHook}\ns_cbranch_scc1 L_mid{tg}\nL_mid_r{tg}:")
        o += as_items(f"s_sub_u32 s{sCnt}, s{sCnt}, 1\ns_cbranch_scc0 L_g1_{tg}")
        return o
    p.loop(7, body)
    p.add(g1_tail(heavy, OL))
    p.add(epilogue1(heavy, OL))
    if not heavy:
        p.add("s_branch L_g2")
        OL.append(publish_side())
    else: OL.append(as_items("L_midh:") + mid_touch("h"))
    own = list(p.segs)
    p.segs += shared
    return p, own

def kernel():
    out = [f".globl {KNAME}", ".p2align 8", f".type {KNAME},@function", f"{KNAME}:"]
    out += ["s_cmp_ge_u32 s2, 256", "s_cbranch_scc1 L_end"]
    out += [f"s_and_b32 s{sT0}, s2, 3", f"s_bfe_u32 s{sT1}, s2, 0x20003", f"s_lshl_b32 s{sHV}, s{sT0}, 1", f"s_add_u32 s{sHV}, s{sHV}, s{sT1}",
            f"s_cmp_lt_u32 s{sT1}, 2", "s_cbranch_scc1 L_heavy",
            f"s_mov_b32 s{sHV}, 8", f"s_lshl_b32 s{sT0}, s{sT0}, 2", f"s_add_u32 s{sT0}, s{sT0}, s{sT1}", f"s_cmp_eq_u32 s{sT0}, 2", "s_cbranch_scc1 L_heavy"]
    OL = []
    sh = Prog()
    sh.add("L_g2:")
    sh.add(g2_all(OL))
    if C.ts: sh.add(ts_store())
    sh.add("s_endpgm")
    pl, ownl = path(False, sh.segs, OL)
    ph, ownh = path(True, sh.segs, OL)
    pl.pass1(); ph.pass1(); pl.pass2(); ph.pass2()
    errs = check_hazards(pl.dyn_text(), "l") + check_hazards(ph.dyn_text(), "h")
    out += pl.text(ownl) + ["L_heavy:"] + ph.text(ownh) + ph.text(sh.segs)
    for o in OL:
        t = [i.text for i in as_items(o)]
        errs += check_hazards(t, "ol")
        out += t
    out += ["L_end:", "s_endpgm"]
    for e in errs: print(e)
    assert not errs
    return out

def write(fn, ts=False, **kw):
    global C
    C = Cfg(); C.ts = ts
    for k_, v_ in kw.items(): setattr(C, k_, v_)
    _nst[0] = 0
    hdr = open("recurrent_scan__spectral_fnet__glu_gated_reglu__prompt.s.ref").read().split("; Override")[0]
    txt = [hdr.rstrip(), "; @launch grid=(256,1,1) block=(256,1,1) lds=163840", '.amdgcn_target "amdgcn-amd-amdhsa--gfx950"', ".text"]
    txt += kernel()
    txt.append(KD.format(name=KNAME, vgpr=512, acc=256))
    open(fn, "w").write("\n".join(txt) + "\n")

if __name__ == "__main__":
    write("full_ts.s", ts=True)
    write("full.s", ts=False)
    write("fine_ts.s", ts=True, fine=True)
```
